```python
import torch

def _softmax(x, axis=-1):
    return torch.softmax(x, dim=axis)
def _gelu(x):
    return torch.nn.functional.gelu(x, approximate="tanh")
def _silu(x):
    return torch.nn.functional.silu(x)
def _sigmoid(x):
    return torch.sigmoid(x)
def _layernorm(x, axis=-1, eps=1e-5):
    m = x.mean(dim=axis, keepdim=True)
    v = x.var(dim=axis, keepdim=True, unbiased=False)
    return (x - m) / torch.sqrt(v + eps)
def _scatter_add(tgt, idx, src, axis=0):
    return tgt.clone().index_add_(axis, idx, src)
def _segment_sum(src, seg, n):
    out = torch.zeros((n,) + src.shape[1:], dtype=src.dtype)
    return out.index_add_(0, seg, src)
def _pad(x, pw):
    flat = tuple(v for pair in reversed(pw) for v in pair)
    return torch.nn.functional.pad(x, flat)

kernel_name = 'parallel_sum__mha_block__glu_gated_reglu__prompt'

def setup_inputs():

    _w = (lambda a: (lambda t: t.to(torch.bfloat16) if t.is_floating_point() else t)(torch.as_tensor(a)))
    def _A_setup():
        B, S, D, H = 1, 2048, 640, 32
        return {
            "x": _w((lambda *s: torch.randn(*s, dtype=torch.bfloat16) * 0.05)(B, S, D)),
            "wqkv": _w((lambda *s: torch.randn(*s, dtype=torch.bfloat16) * 0.05)(D, 3 * D)),
            "wo": _w((lambda *s: torch.randn(*s, dtype=torch.bfloat16) * 0.05)(D, D)),
        }
    _A_in = _A_setup()

    def _B_setup():
        B, S, D, F = 1, 2048, 640, 1536
        return {
            "x": _w((lambda *s: torch.randn(*s, dtype=torch.bfloat16) * 0.05)(B, S, D)),
            "W_gate": _w((lambda *s: torch.randn(*s, dtype=torch.bfloat16) * 0.4)(D, F) * (2.0 / D) ** 0.5),
            "W_up": _w((lambda *s: torch.randn(*s, dtype=torch.bfloat16) * 0.4)(D, F) * (2.0 / D) ** 0.5),
            "W_down": _w((lambda *s: torch.randn(*s, dtype=torch.bfloat16) * 0.4)(F, D) * (1.0 / F) ** 0.5),
        }
    _B_in = _B_setup()

    return {
        "A_x": _A_in["x"],
        "A_wqkv": _A_in["wqkv"],
        "A_wo": _A_in["wo"],
        "B_x": _B_in["x"],
        "B_W_gate": _B_in["W_gate"],
        "B_W_up": _B_in["W_up"],
        "B_W_down": _B_in["W_down"],
    }

def reference(A_x, A_wqkv, A_wo, B_x, B_W_gate, B_W_up, B_W_down):
    def _A_ref(x, wqkv, wo):
        B, S, D = x.shape
        H = 32
        Dh = D // H
        qkv = (lambda x, *d: x.permute(*d))((x @ wqkv).reshape(B, S, 3, H, Dh), 2, 0, 3, 1, 4)
        q, k, v = qkv[0], qkv[1], qkv[2]
        scores = torch.einsum("bhqd,bhkd->bhqk", q, k) * (Dh ** -0.5)
        p = _softmax(scores, axis=-1)
        o = torch.einsum("bhqk,bhkd->bhqd", p, v)
        return (lambda x, *d: x.permute(*d))(o, 0, 2, 1, 3).reshape(B, S, D) @ wo

    def _B_ref(x, W_gate, W_up, W_down):
        gate = torch.einsum("bsd,df->bsf", x, W_gate)
        up = torch.einsum("bsd,df->bsf", x, W_up)
        gate = gate * (lambda x, dt: x.to(dt))(gate > 0, gate.dtype)
        h = gate * up
        return torch.einsum("bsf,fd->bsd", h, W_down)

    x = A_x
    xn = _layernorm(x, axis=-1)
    return x + _A_ref(xn, A_wqkv, A_wo) + _B_ref(xn, B_W_gate, B_W_up, B_W_down)
```

```python
class Asm:
    def __init__(self):
        self.lines = []
    def __call__(self, s):
        for l in s.strip("\n").split("\n"):
            self.lines.append("    " + l.strip())
    def label(self, l):
        self.lines.append(l + ":")
    def comment(self, s):
        self.lines.append("    ; " + s)
    def raw(self, s):
        self.lines.append(s)
    def text(self):
        return "\n".join(self.lines) + "\n"

def v(i, n=1):
    return f"v{i}" if n == 1 else f"v[{i}:{i+n-1}]"
def a(i, n=1):
    return f"a{i}" if n == 1 else f"a[{i}:{i+n-1}]"
def s(i, n=1):
    return f"s{i}" if n == 1 else f"s[{i}:{i+n-1}]"

S, D, H, DH, F = 2048, 640, 32, 20, 1536
KA_X, KA_WQKV, KA_WO, KA_BX, KA_WG, KA_WU, KA_WD, KA_OUT, KA_DBG, KA_WS = 0, 8, 16, 24, 32, 40, 48, 56, 64, 72
QK_TILE = 1280
Q_HEAD = 64 * QK_TILE
WS_Q = 0
V_PLANE = 288
V_TILE = 6 * V_PLANE
KV_VOFF = 8 * QK_TILE
KV_CHUNK = 24576
KV_HEAD = 8 * KV_CHUNK
WS_KV = WS_Q + H * Q_HEAD
WS_H = WS_KV + H * KV_HEAD
WS_O = WS_H + S * F * 2
WS_Y = WS_O + S * D * 2
WS_END = WS_Y + S * D * 4
WS_SIZE = 268435456

def kernel_header(name):
    return f""".globl {name}
.p2align 8
.type {name},@function
{name}:
"""
def kernel_desc(name, vgpr, accum, sgpr=102):
    return f""".amdhsa_kernel {name}
  .amdhsa_next_free_vgpr {vgpr}
  .amdhsa_next_free_sgpr {sgpr}
  .amdhsa_accum_offset {accum}
  .amdhsa_group_segment_fixed_size 0
  .amdhsa_kernarg_size 80
  .amdhsa_user_sgpr_count 2
  .amdhsa_user_sgpr_kernarg_segment_ptr 1
  .amdhsa_system_sgpr_workgroup_id_x 1
  .amdhsa_float_denorm_mode_32 3
.end_amdhsa_kernel
"""
def srd(A, d, lo, hi, size):
    A(f"s_mov_b32 s{d}, s{lo}")
    A(f"s_and_b32 s{d+1}, s{hi}, 0xffff")
    A(f"s_mov_b32 s{d+2}, {size}")
    A(f"s_mov_b32 s{d+3}, 0x00020000")
```

```python
from common import *
import struct
def f32bits(x): return struct.unpack("<I", struct.pack("<f", x))[0]

NSLOT = 6
P1OFF = 10272
SLOT = 21536
XC_BASE = NSLOT * SLOT
ST_BASE = XC_BASE + 24576
K1_LDS = ST_BASE + 2048
XS_BASE = 4 * SLOT

def gen_k1(name="k1_kernel", Dahead=6, map_mode=0, stamps=False, exp=0):
    A = Asm()
    def stamp(i):
        if not stamps: return
        A(f"s_memtime s[70:71]")
        A("s_waitcnt lgkmcnt(0)")
        A(f"s_mov_b32 s{72+i}, s70")
    A.raw(kernel_header(name))
    WF = 24
    X = 64
    XC = 144
    T = 152
    MF, RD, LP, XRD, XWR = 160, 161, 162, 163, 164
    DMA = 165
    SX, SXX = 168, 169
    XO = 170
    LANE = 1
    sX, sW, sWS = 24, 28, 32
    sWAVE, sMB, sNB, sLDW, sDOFF, sSTEP, sWR, sRD, sC, sXI = 40, 41, 42, 43, 44, 45, 47, 48, 49, 46
    sM0 = 52
    sTG, sPH = 55, 56
    sOWN0, sOWN1 = 57, 58
    sWRC = 68
    sXB = 59
    sROW0 = 62
    sHS, sHO = 63, 64
    sHFM = 66

    A(f"s_cmp_ge_u32 s2, 256")
    A(f"s_cbranch_scc1 {name}_end")
    stamp(0)
    A("s_load_dwordx16 s[4:19], s[0:1], 0")
    A("s_load_dwordx4 s[20:23], s[0:1], 64")
    A(f"v_and_b32 v{LANE}, 63, v0")
    A("v_lshrrev_b32 v2, 6, v0")
    A("s_and_b32 s50, s2, 7")
    A("s_lshr_b32 s51, s2, 3")
    A(f"v_readfirstlane_b32 s{sWAVE}, v2")
    if map_mode == 0:
        A(f"s_and_b32 s{sMB}, s50, 1\ns_lshl_b32 s{sMB}, s{sMB}, 3\ns_and_b32 s60, s51, 7\ns_add_u32 s{sMB}, s{sMB}, s60")
        A(f"s_lshr_b32 s{sNB}, s50, 1\ns_lshl_b32 s{sNB}, s{sNB}, 2\ns_lshr_b32 s60, s51, 3\ns_add_u32 s{sNB}, s{sNB}, s60")
    else:
        A(f"s_and_b32 s{sMB}, s50, 3\ns_lshl_b32 s{sMB}, s{sMB}, 2\ns_and_b32 s60, s51, 3\ns_add_u32 s{sMB}, s{sMB}, s60")
        A(f"s_lshr_b32 s{sNB}, s50, 2\ns_lshl_b32 s{sNB}, s{sNB}, 3\ns_lshr_b32 s60, s51, 2\ns_add_u32 s{sNB}, s{sNB}, s60")
    A(f"s_and_b32 s{sTG}, s{sWAVE}, 3\ns_lshr_b32 s{sPH}, s{sWAVE}, 2")
    A(f"s_lshl_b32 s{sROW0}, s{sMB}, 7\ns_lshl_b32 s60, s{sTG}, 5\ns_add_u32 s{sROW0}, s{sROW0}, s60")
    A(f"v_lshrrev_b32 v2, 3, v{LANE}")
    A(f"v_add_u32 v3, s{sROW0}, v2")
    A("s_movk_i32 s60, 1280")
    A("v_mul_lo_u32 v3, v3, s60")
    A(f"v_and_b32 v4, 3, v{LANE}")
    A("v_lshl_add_u32 v3, v4, 4, v3")
    A(f"v_bfe_u32 v4, v{LANE}, 2, 1")
    A("v_lshl_add_u32 v3, v4, 7, v3")
    A(f"v_and_b32 v4, 7, v{LANE}")
    A(f"s_lshl_b32 s60, s{sPH}, 6")
    A("v_add_u32 v3, s60, v3")
    A("s_mov_b32 s76, 0\ns_mov_b32 s77, 10240\ns_mov_b32 s78, 20480\ns_mov_b32 s79, 30720" if not stamps else
      "s_mov_b32 s80, 0\ns_mov_b32 s81, 10240\ns_mov_b32 s82, 20480\ns_mov_b32 s83, 30720")
    sU = 80 if stamps else 76
    A("s_waitcnt lgkmcnt(0)")
    srd(A, sX, 4, 5, S * D * 2)
    for r in range(5):
        for u in range(4):
            A(f"buffer_load_dwordx4 {v(X+16*r+4*u,4)}, v3, s[{sX}:{sX+3}], s{sU+u} offen offset:{r*256}")
    srd(A, sWS, 22, 23, WS_SIZE)
    A(f"s_cmp_lt_u32 s{sNB}, 6")
    A(f"s_cbranch_scc0 {name}_gu_src")
    A(f"s_mov_b32 s{sW}, s6\ns_and_b32 s{sW+1}, s7, 0xffff\ns_mov_b32 s{sW+2}, {D*1920*2}")
    A(f"s_movk_i32 s{sLDW}, 3840")
    A(f"s_mul_i32 s{sDOFF}, s{sNB}, 640\ns_mul_i32 s51, s{sPH}, 320\ns_add_u32 s{sDOFF}, s{sDOFF}, s51")
    A(f"s_branch {name}_src_done")
    A.label(f"{name}_gu_src")
    A(f"s_cmp_eq_u32 s{sPH}, 0")
    A(f"s_cselect_b32 s{sW}, s12, s14\ns_cselect_b32 s{sW+1}, s13, s15")
    A(f"s_and_b32 s{sW+1}, s{sW+1}, 0xffff\ns_mov_b32 s{sW+2}, {D*F*2}")
    A(f"s_movk_i32 s{sLDW}, 3072")
    A(f"s_sub_u32 s{sDOFF}, s{sNB}, 6\ns_mul_i32 s{sDOFF}, s{sDOFF}, 320")
    A.label(f"{name}_src_done")
    A(f"s_mov_b32 s{sW+3}, 0x00020000")
    A(f"s_lshl_b32 s{sSTEP}, s{sLDW}, 5")
    A(f"s_mul_i32 s51, s{sTG}, 192")
    A("s_movk_i32 s60, 3277")
    A(f"s_mul_i32 s50, s{sPH}, {P1OFF}")
    A(f"s_mul_i32 s61, s{sTG}, 3072\ns_add_u32 s50, s50, s61")
    for j in range(3):
        A(f"v_add_u32 v5, s51, v{LANE}")
        if j: A(f"v_add_u32 v5, {j*64}, v5")
        A("v_mul_lo_u32 v6, v5, s60")
        A("v_lshrrev_b32 v6, 16, v6")
        A("v_mul_u32_u24 v7, 20, v6")
        A("v_sub_u32 v7, v5, v7")
        A(f"v_mul_lo_u32 v6, v6, s{sLDW}")
        A(f"v_lshl_add_u32 v{DMA+j}, v7, 4, v6")
        A(f"s_add_u32 s{sM0+j}, s50, {j*1024}")
        if j > 0:
            A(f"s_cmp_eq_u32 s{sTG}, 3")
            A(f"s_cselect_b32 s{sM0+j}, 20512, s{sM0+j}")
            A(f"s_cselect_b32 s61, 0x7ff00000, 0")
            A(f"v_or_b32 v{DMA+j}, s61, v{DMA+j}")
    def dma_chunk_static(c):
        for j in range(3):
            A(f"s_add_u32 m0, s{sM0+j}, {c*SLOT}")
            A("s_nop 0")
            A(f"buffer_load_dwordx4 v{DMA+j}, s[{sW}:{sW+3}], s{sDOFF} offen lds")
        A(f"s_add_u32 s{sDOFF}, s{sDOFF}, s{sSTEP}")
    for c in range(4): dma_chunk_static(c)
    stamp(1)
    A(f"s_mul_i32 s60, s{sWAVE}, 4608\ns_add_u32 s60, s60, {XS_BASE}")
    A("v_mul_u32_u24 v5, 144, v2")
    A("v_lshl_add_u32 v5, v4, 4, v5")
    A("v_add_u32 v5, s60, v5")
    A(f"v_and_b32 v6, 31, v{LANE}")
    A(f"v_lshrrev_b32 v7, 5, v{LANE}")
    A("v_mul_u32_u24 v20, 144, v6")
    A("v_lshl_add_u32 v20, v7, 4, v20")
    A("v_add_u32 v20, s60, v20")
    A(f"v_cmp_lt_u32 s[{sHFM}:{sHFM+1}], 31, v{LANE}")
    A(f"v_and_b32 v21, 15, v{LANE}")
    A("v_lshrrev_b32 v22, 2, v21")
    A("v_lshl_add_u32 v22, v7, 3, v22")
    A(f"v_mul_u32_u24 v{LP}, 320, v22")
    A("v_and_b32 v22, 3, v21")
    A(f"v_lshl_add_u32 v{LP}, v22, 3, v{LP}")
    A(f"v_bfe_u32 v22, v{LANE}, 4, 1")
    A(f"v_mul_u32_u24 v22, {P1OFF}, v22")
    A(f"v_add_u32 v{LP}, v22, v{LP}")
    A(f"s_mul_i32 s60, s{sPH}, 160")
    A(f"v_add_u32 v{LP}, s60, v{LP}")
    A(f"v_mov_b32 v{RD}, v{LP}")
    A(f"s_mul_i32 s60, s{sTG}, 6144\ns_add_u32 s60, s60, {XC_BASE}")
    A(f"v_lshlrev_b32 v{XRD}, 4, v{LANE}")
    A(f"v_add_u32 v{XRD}, s60, v{XRD}")
    A("v_mov_b32 v21, 0x3f803f80")
    for i in range(8): A(f"v_mov_b32 v{T+i}, 0")
    for i in range(80): A(f"v_accvgpr_write_b32 a{i}, 0")
    for r in range(5):
        A(f"s_waitcnt vmcnt({20-4*(r+1)+12})")
        for u in range(4):
            A(f"ds_write_b128 v5, {v(X+16*r+4*u,4)} offset:{u*1152}")
        for sp in range(4):
            A(f"ds_read_b128 {v(X+16*r+4*sp,4)}, v20 offset:{sp*32}")
        if r > 0:
            for i in range(16):
                A(f"v_dot2c_f32_bf16 v{T+(i&3)}, v{X+16*(r-1)+i}, v21")
                A(f"v_dot2c_f32_bf16 v{T+4+(i&3)}, v{X+16*(r-1)+i}, v{X+16*(r-1)+i}")
        A("s_waitcnt lgkmcnt(0)")
    for i in range(16):
        A(f"v_dot2c_f32_bf16 v{T+(i&3)}, v{X+64+i}, v21")
        A(f"v_dot2c_f32_bf16 v{T+4+(i&3)}, v{X+64+i}, v{X+64+i}")
    A(f"s_lshl_b32 s60, s{sTG}, 9\ns_add_u32 s60, s60, {ST_BASE}")
    A("v_lshlrev_b32 v22, 3, v6\nv_add_u32 v22, s60, v22")
    A(f"s_lshl_b32 s61, s{sPH}, 8\nv_add_u32 v23, s61, v22")
    A(f"v_add_f32 v{T}, v{T}, v{T+1}\nv_add_f32 v{T+2}, v{T+2}, v{T+3}\nv_add_f32 v{T+4}, v{T+4}, v{T+5}\nv_add_f32 v{T+6}, v{T+6}, v{T+7}")
    A(f"v_add_f32 v{T}, v{T}, v{T+2}\nv_add_f32 v{T+4}, v{T+4}, v{T+6}")
    A(f"v_mov_b32 v{T+1}, v{T}\nv_mov_b32 v{T+5}, v{T+4}")
    A("s_nop 1")
    A(f"v_permlane32_swap_b32 v{T}, v{T+1}\nv_permlane32_swap_b32 v{T+4}, v{T+5}")
    A("s_nop 1")
    A(f"v_add_f32 v{T}, v{T}, v{T+1}\nv_add_f32 v{T+1}, v{T+4}, v{T+5}")
    A(f"ds_write_b64 v23, {v(T,2)}")
    A("s_waitcnt lgkmcnt(0)")
    A("s_barrier")
    A(f"ds_read_b64 {v(T,2)}, v22\nds_read_b64 {v(T+2,2)}, v22 offset:256")
    dma_chunk_static(4)
    A("s_waitcnt lgkmcnt(0)")
    stamp(2)
    A(f"v_add_f32 v{SX}, v{T}, v{T+2}\nv_add_f32 v{SXX}, v{T+1}, v{T+3}")
    A(f"v_mul_f32 v{SX}, {hex(f32bits(1.0/640))}, v{SX}")
    A(f"v_cvt_pk_bf16_f32 v{T+1}, v{SX}, v{SX}")
    A(f"v_and_b32 v{MF}, 0xffff0000, v{T+1}")
    def centre4(src, idx, dst):
        w1 = ([f"s_set_gpr_idx_on s{sXI}, 0x2"] if idx else []) + \
             sum([[f"v_lshlrev_b32 v{T+2*j}, 16, v{src+j}", f"v_and_b32 v{T+2*j+1}, 0xffff0000, v{src+j}"] for j in range(4)], []) + \
             (["s_set_gpr_idx_off"] if idx else [])
        rest = []
        for j in range(4):
            rest += [f"v_sub_f32 v{T+2*j}, v{T+2*j}, v{MF}", f"v_sub_f32 v{T+2*j+1}, v{T+2*j+1}, v{MF}",
                     f"v_cvt_pk_bf16_f32 v{dst+j}, v{T+2*j}, v{T+2*j+1}"]
        return w1, rest
    A(f"s_lshl_b32 s60, s{sPH}, 11\nv_add_u32 v{XWR}, s60, v{XRD}")
    for ks in range(2):
        w1, rest = centre4(X + 4 * ks, False, XO)
        for o in w1 + rest: A(o)
        A(f"ds_write_b128 v{XWR}, {v(XO,4)} offset:{ks*1024}")
    A(f"s_cmp_eq_u32 s{sPH}, 0")
    A(f"s_cbranch_scc0 {name}_noc2")
    w1, rest = centre4(X + 8, False, XO)
    for o in w1 + rest: A(o)
    A(f"ds_write_b128 v{XRD}, {v(XO,4)} offset:4096")
    A.label(f"{name}_noc2")
    A(f"s_mov_b32 s{sC}, 0")
    A(f"s_mov_b32 s{sWR}, {5*SLOT}")
    A(f"s_mov_b32 s{sRD}, {SLOT}")
    A(f"s_mul_i32 s{sXI}, s{sPH}, -4\ns_add_u32 s{sXI}, s{sXI}, 12")
    A(f"s_mov_b32 s{sXB}, 2048")
    A(f"s_cmp_eq_u32 s{sPH}, 0")
    A(f"s_cselect_b32 s{sOWN0}, {5*1024}, 0")
    A(f"s_cselect_b32 s{sOWN1}, 2048, 0\ns_add_u32 s{sOWN1}, s{sOWN1}, 1024")
    A("s_waitcnt vmcnt(12) lgkmcnt(0)")
    A("s_barrier")
    stamp(3)
    def rd_ops(m):
        ks, tp = divmod(m % 10, 5)
        buf = WF + 4 * (m % 10)
        return [f"ds_read_b64_tr_b16 {v(buf+2*j,2)}, v{RD} offset:{(16*ks+4*j)*320 + tp*32}" for j in range(2)]
    assert Dahead == 6
    for m in range(Dahead):
        for o in rd_ops(m): A(o)
        if m == 0: A(f"ds_read_b128 {v(XC,4)}, v{XRD}")
    A(f"ds_read_b128 {v(XC+4,4)}, v{XRD} offset:1024")
    A(".p2align 6")
    A.label(f"{name}_loop")
    fill = {g: [] for g in range(10)}
    bar_gap = 10 - Dahead - 1
    fill[bar_gap] += ["s_waitcnt vmcnt(9)", "s_barrier", f"v_add_u32 v{RD}, s{sRD}, v{LP}", f"v_add_u32 v23, s{sXB}, v{XRD}"]
    fill[2] += [f"s_cmp_lt_u32 s{sC}, 15", f"s_cselect_b32 s50, s{sDOFF}, 0x40000000", f"v_add_u32 v{XWR}, s{sOWN0}, v{XRD}"]
    dpos = [4, 6, 8]
    dma_ops = {}
    for j in range(3):
        if exp & 1: continue
        dma_ops[dpos[j]] = [f"s_add_u32 m0, s{sWR}, s{sM0+j}", "s_nop 0", f"buffer_load_dwordx4 v{DMA+j}, s[{sW}:{sW+3}], s50 offen lds"]
    xrd = {4: [f"ds_read_b128 {v(XC,4)}, v23"], 9: [f"ds_read_b128 {v(XC+4,4)}, v23 offset:1024"]}
    w1, r1 = centre4(X, True, XO)
    fill[0] += w1[:5] + ["s_set_gpr_idx_off"]
    fill[1] += [w1[0]] + w1[5:]
    fill[2] += r1[:3]
    fill[5] += r1[3:9]
    fill[7] += r1[9:] + [f"ds_write_b128 v{XWR}, {v(XO,4)}"]
    fill[9] += [f"s_add_u32 s{sXI}, s{sXI}, 4",
                f"s_add_u32 s{sDOFF}, s{sDOFF}, s{sSTEP}",
                f"s_add_u32 s{sWR}, s{sWR}, {SLOT}", f"s_cmp_ge_u32 s{sWR}, {NSLOT*SLOT}", f"s_cselect_b32 s{sWR}, 0, s{sWR}"]
    fill[6] += [f"s_add_u32 s{sRD}, s{sRD}, {SLOT}", f"s_cmp_ge_u32 s{sRD}, {NSLOT*SLOT}", f"s_cselect_b32 s{sRD}, 0, s{sRD}"]
    fill[5] += [f"s_add_u32 s{sXB}, s{sXB}, 2048", f"s_cmp_ge_u32 s{sXB}, 6144", f"s_cselect_b32 s{sXB}, 0, s{sXB}"]
    fill[8] += [f"s_add_u32 s{sOWN0}, s{sOWN0}, s{sOWN1}", f"s_xor_b32 s{sOWN1}, s{sOWN1}, 2048",
                f"s_cmp_ge_u32 s{sOWN0}, 6144", f"s_cselect_b32 s51, 6144, 0", f"s_sub_u32 s{sOWN0}, s{sOWN0}, s51"]
    fill[9] += [f"s_add_u32 s{sC}, s{sC}, 1", f"s_cmp_lt_u32 s{sC}, 20", f"s_cbranch_scc1 {name}_loop"]
    for g, ops in dma_ops.items(): fill[g] = ops + fill[g]
    seq = []
    for m in range(10):
        seq.append(("mfma", m))
        for _ in range(2): seq.append(("lds", ("w", (m + Dahead) % 10)))
        if m in xrd: seq.append(("lds", ("x", 0 if m == 4 else 1)))
    full = seq + seq
    L = len(seq)
    for m in range(10):
        pos = L + seq.index(("mfma", m))
        n_after = []
        for nd in [("w", m), ("x", m // 5)]:
            p = max(i for i in range(pos) if full[i] == ("lds", nd))
            n_after.append(sum(1 for i in range(p + 1, pos) if full[i][0] == "lds"))
        A(f"s_waitcnt lgkmcnt({min(min(n_after), 15)})")
        ks, tp = divmod(m, 5)
        A(f"v_mfma_f32_32x32x16_bf16 {a(16*tp,16)}, {v(WF+4*m,4)}, {v(XC+4*ks,4)}, {a(16*tp,16)}")
        if not exp & 8:
            for o in rd_ops(m + Dahead): A(o)
        for o in xrd.get(m, []): A(o)
        for o in fill[m]:
            if exp & 2 and o == "s_barrier": continue
            if exp & 4 and (o.startswith("v_sub") or o.startswith("v_cvt") or o.startswith("v_lshl") or o.startswith("v_and") or o.startswith("s_set_gpr") or o.startswith("ds_write")): continue
            A(o)
    A.label(f"{name}_done")
    A("s_waitcnt lgkmcnt(0)")
    stamp(4)
    A(f"v_mul_f32 v{T}, {hex(f32bits(1.0/640))}, v{SXX}")
    A(f"v_fma_f32 v{T}, -v{SX}, v{SX}, v{T}")
    A(f"v_max_f32 v{T}, 0, v{T}")
    A(f"v_cvt_pk_bf16_f32 v{T}, v{T}, v{T}\nv_lshlrev_b32 v{T}, 16, v{T}")
    A(f"v_add_f32 v{T}, {hex(f32bits(1e-5))}, v{T}")
    A(f"v_cvt_pk_bf16_f32 v{T}, v{T}, v{T}\nv_lshlrev_b32 v{T}, 16, v{T}")
    A(f"v_sqrt_f32 v{T}, v{T}")
    A("s_nop 0")
    A(f"v_cvt_pk_bf16_f32 v{T}, v{T}, v{T}\nv_lshlrev_b32 v{T}, 16, v{T}")
    A(f"v_rcp_f32 v{MF}, v{T}")
    A(f"s_cmp_lt_u32 s{sNB}, 6")
    A(f"s_cbranch_scc0 {name}_epi_h")
    VA = 24
    A(f"s_and_b32 s50, s{sNB}, 1\ns_lshl_b32 s50, s50, 4\ns_lshl_b32 s51, s{sPH}, 2\ns_add_u32 s65, s50, s51")
    A(f"s_cmp_lt_u32 s{sNB}, 4")
    A(f"s_cbranch_scc0 {name}_epi_v")
    A(f"s_cmp_lt_u32 s{sNB}, 2")
    A(f"s_cbranch_scc0 {name}_epi_k")
    A(f"s_mov_b32 s{sHS}, {Q_HEAD}")
    A(f"s_lshr_b32 s51, s{sROW0}, 5\ns_mul_i32 s51, s51, {QK_TILE}\ns_add_u32 s50, s51, {WS_Q}")
    A(f"v_mul_f32 v{MF}, {hex(f32bits((20 ** -0.5) * 1.4426950408889634))}, v{MF}")
    A(f"s_branch {name}_epi_qk")
    A.label(f"{name}_epi_k")
    A(f"s_mov_b32 s{sHS}, {KV_HEAD}")
    A(f"s_lshr_b32 s51, s{sROW0}, 8\ns_mul_i32 s51, s51, {KV_CHUNK}\ns_add_u32 s50, s51, {WS_KV}")
    A(f"s_lshr_b32 s51, s{sROW0}, 5\ns_and_b32 s51, s51, 7\ns_mul_i32 s51, s51, {QK_TILE}\ns_add_u32 s50, s50, s51")
    A.label(f"{name}_epi_qk")
    A(f"s_mul_i32 s51, s65, s{sHS}\ns_add_u32 s50, s50, s51")
    A("v_lshlrev_b32 v2, 4, v6\nv_add_u32 v2, s50, v2")
    A("v_lshlrev_b32 v3, 3, v6\nv_add_u32 v3, s50, v3\nv_add_u32 v3, 1024, v3")
    A(f"v_add_u32 v8, s{sHS}, v2")
    offs = [("v2", 0), ("v2", 8), ("v2", 512), ("v2", 520), ("v3", 0), ("v8", 0)]
    for dq in range(5):
        (b0, c0), (b1, c1_) = offs[dq], offs[dq + 1]
        A(f"v_add_u32 v4, {c0}, {b0}\nv_add_u32 v5, {c1_}, {b1}")
        A(f"v_cndmask_b32 v{VA+dq}, v4, v5, s[{sHFM}:{sHFM+1}]")
    A(f"s_branch {name}_epi_qkv")
    A.label(f"{name}_epi_v")
    A(f"s_mov_b32 s{sHS}, {KV_HEAD}")
    A(f"s_lshr_b32 s51, s{sROW0}, 8\ns_mul_i32 s51, s51, {KV_CHUNK}\ns_add_u32 s50, s51, {WS_KV + KV_VOFF}")
    A(f"s_lshr_b32 s51, s{sROW0}, 5\ns_and_b32 s51, s51, 7\ns_mul_i32 s51, s51, {V_TILE}\ns_add_u32 s50, s50, s51")
    A(f"s_mul_i32 s51, s65, s{sHS}\ns_add_u32 s50, s50, s51")
    A("v_lshlrev_b32 v2, 3, v6\nv_add_u32 v2, s50, v2")
    for dq in range(5):
        c0, c1_ = dq * V_PLANE, ((dq + 1) * V_PLANE if dq < 4 else KV_HEAD)
        A(f"v_add_u32 v4, {c0}, v2\nv_add_u32 v5, {c1_}, v2")
        A(f"v_cndmask_b32 v{VA+dq}, v4, v5, s[{sHFM}:{sHFM+1}]")
    A(f"s_mov_b32 s51, {8*KV_HEAD}\nv_mul_lo_u32 v3, v7, s51\nv_add_u32 v3, v3, v2")
    A("v_mov_b32 v4, 0x3f80\nv_mov_b32 v5, 0")
    A(f"s_mov_b32 s{sHO}, 0")
    for i in range(4):
        A(f"buffer_store_dwordx2 v[4:5], v3, s[{sWS}:{sWS+3}], s{sHO} offen offset:{5*V_PLANE}")
        if i < 3: A(f"s_add_u32 s{sHO}, s{sHO}, s{sHS}")
    A.label(f"{name}_epi_qkv")
    A(f"v_mov_b32 v{MF+1}, v{MF}")
    A(f"s_lshl_b32 s61, s{sHS}, 3")
    q = 0
    for p in range(2):
        cur = 0
        A(f"s_mov_b32 s{sHO}, 0" if p == 0 else f"s_mov_b32 s{sHO}, s61")
        for tp in range(5):
            for a2 in range(2):
                g0 = 4 * tp + 2 * a2
                hh, dq0 = g0 // 5, g0 % 5
                while cur < hh:
                    A(f"s_add_u32 s{sHO}, s{sHO}, s{sHS}"); cur += 1
                E = 32 + 8 * (q % 4); q += 1
                base = tp * 16 + 8 * p + 4 * a2
                for i in range(4): A(f"v_accvgpr_read_b32 v{E+i}, a{base+i}")
                A(f"v_pk_mul_f32 {v(E,2)}, {v(E,2)}, {v(MF,2)}\nv_pk_mul_f32 {v(E+2,2)}, {v(E+2,2)}, {v(MF,2)}")
                A(f"v_cvt_pk_bf16_f32 v{E+4}, v{E}, v{E+1}\nv_cvt_pk_bf16_f32 v{E+5}, v{E+2}, v{E+3}")
                A(f"buffer_store_dwordx2 {v(E+4,2)}, v{VA+dq0}, s[{sWS}:{sWS+3}], s{sHO} offen")
    A(f"s_branch {name}_end")
    A.label(f"{name}_epi_h")
    A(f"v_mul_f32 v{MF}, v{MF}, v{MF}")
    A(f"v_mov_b32 v{MF+1}, v{MF}")
    A(f"s_lshr_b32 s50, s{sROW0}, 5\ns_mul_i32 s50, s50, 98304\ns_add_u32 s50, s50, {WS_H}")
    A(f"s_sub_u32 s51, s{sNB}, 6\ns_mul_i32 s51, s51, 10240\ns_add_u32 s50, s50, s51")
    A(f"s_mul_i32 s51, s{sPH}, 5120\ns_add_u32 s50, s50, s51")
    A("v_lshlrev_b32 v2, 4, v6\nv_lshl_add_u32 v2, v7, 3, v2")
    A(f"s_cmp_eq_u32 s{sNB}, 15\ns_cselect_b32 s61, s{sPH}, 0")
    q = 0
    for tp in range(5):
        if tp == 1:
            A(f"s_cmp_eq_u32 s61, 1\ns_cbranch_scc1 {name}_end")
        for a2 in range(2):
            E = 32 + 12 * (q % 2); q += 1
            bg, bu = tp * 16 + 4 * a2, tp * 16 + 8 + 4 * a2
            for i in range(4): A(f"v_accvgpr_read_b32 v{E+i}, a{bg+i}")
            for i in range(4): A(f"v_accvgpr_read_b32 v{E+4+i}, a{bu+i}")
            A(f"v_pk_mul_f32 {v(E,2)}, {v(E,2)}, {v(MF,2)}\nv_pk_mul_f32 {v(E+2,2)}, {v(E+2,2)}, {v(MF,2)}")
            for i in range(4): A(f"v_max_f32 v{E+i}, 0, v{E+i}")
            A(f"v_pk_mul_f32 {v(E,2)}, {v(E,2)}, {v(E+4,2)}\nv_pk_mul_f32 {v(E+2,2)}, {v(E+2,2)}, {v(E+6,2)}")
            A(f"v_cvt_pk_bf16_f32 v{E+8}, v{E}, v{E+1}\nv_cvt_pk_bf16_f32 v{E+9}, v{E+2}, v{E+3}")
            A(f"buffer_store_dwordx2 {v(E+8,2)}, v2, s[{sWS}:{sWS+3}], s50 offen offset:{(tp%4)*1024 + a2*512}")
        if tp == 3: A("s_add_u32 s50, s50, 4096")
    A.label(f"{name}_end")
    if stamps:
        A("s_cmp_ge_u32 s2, 256")
        A(f"s_cbranch_scc1 {name}_end2")
        A("s_waitcnt vmcnt(0)")
        stamp(5)
        A(f"s_lshl_b32 s50, s2, 3\ns_add_u32 s50, s50, s{sWAVE}\ns_lshl_b32 s50, s50, 6\ns_add_u32 s50, s50, {WS_END}")
        A("v_mov_b32 v2, 0")
        for i in range(6):
            A(f"v_mov_b32 v3, s{72+i}")
            A(f"buffer_store_dword v3, v2, s[{sWS}:{sWS+3}], s50 offen offset:{4*i}")
        A.label(f"{name}_end2")
    A("s_waitcnt vmcnt(0)")
    A("s_endpgm")
    return A.text(), kernel_desc(name, 256, 176)
```

```python
from common import *
import struct
def f32bits(x): return struct.unpack("<I", struct.pack("<f", x))[0]

KVSLOT = KV_CHUNK
GW_BASE = 3 * KVSLOT
GW_STAGE = 5120
GW_WAVE = 4 * GW_STAGE
K2_LDS = GW_BASE + 4 * GW_WAVE
RED_BASE = GW_BASE

def gemm_lane_setup(A, LANE, sLDWrow, VD, VRD):
    A("s_movk_i32 s60, 3277")
    A("s_movk_i32 s61, 1280")
    for i in range(5):
        A(f"v_add_u32 v5, {i*64}, v{LANE}")
        A("v_mul_lo_u32 v6, v5, s60")
        A("v_lshrrev_b32 v6, 16, v6")
        A("v_mul_u32_u24 v7, 20, v6")
        A("v_sub_u32 v7, v5, v7")
        A("v_mul_lo_u32 v6, v6, s61")
        A(f"v_lshl_add_u32 v{VD+i}, v7, 4, v6")
    A(f"v_and_b32 v5, 15, v{LANE}")
    A(f"v_lshrrev_b32 v6, 5, v{LANE}")
    A("v_lshrrev_b32 v7, 2, v5")
    A("v_lshl_add_u32 v7, v6, 3, v7")
    A(f"v_mul_u32_u24 v{VRD}, 320, v7")
    A("v_and_b32 v7, 3, v5")
    A(f"v_lshl_add_u32 v{VRD}, v7, 3, v{VRD}")
    A(f"v_bfe_u32 v7, v{LANE}, 4, 1")
    A(f"v_lshl_add_u32 v{VRD}, v7, 5, v{VRD}")

def gen_k2(name="k2_kernel", stamps=False, force_fallback=False, no_gemm=False):
    A = Asm()
    A.raw(kernel_header(name))
    LANE = 1
    sWS, sX, sWD = 24, 28, 32
    sWAVE, sHEAD, sQB, sT, sNQ = 40, 41, 42, 43, 44
    def stamp(i):
        if not stamps: return
        A(f"s_memtime s[70:71]")
        A("s_waitcnt lgkmcnt(0)")
        A(f"s_mov_b32 s{72+i}, s70")
    def stamp_out(n, lab):
        if not stamps: return
        A("s_waitcnt vmcnt(0)")
        stamp(n)
        A(f"s_mul_i32 s50, s2, 12\ns_add_u32 s50, s50, s{sWAVE}\ns_lshl_b32 s50, s50, 6\ns_add_u32 s50, s50, {WS_END}")
        A("v_mov_b32 v2, 0")
        for i in range(n + 1):
            A(f"v_mov_b32 v3, s{72+i}")
            A(f"buffer_store_dword v3, v2, s[{sWS}:{sWS+3}], s50 offen offset:{4*i}")
    A("s_cmp_ge_u32 s2, 256")
    A(f"s_cbranch_scc1 {name}_end")
    stamp(0)
    A("s_load_dwordx2 s[4:5], s[0:1], 0")
    A("s_load_dwordx2 s[6:7], s[0:1], 48")
    A("s_load_dwordx2 s[8:9], s[0:1], 72")
    A(f"v_and_b32 v{LANE}, 63, v0")
    A("v_lshrrev_b32 v2, 6, v0")
    A("s_and_b32 s50, s2, 7\ns_lshr_b32 s51, s2, 3")
    A(f"v_readfirstlane_b32 s{sWAVE}, v2")
    A(f"s_and_b32 s{sHEAD}, s51, 3\ns_lshl_b32 s52, s50, 2\ns_add_u32 s{sHEAD}, s{sHEAD}, s52")
    A(f"s_lshr_b32 s{sQB}, s51, 2")
    A(f"s_and_b32 s{sT}, s51, 7\ns_lshl_b32 s52, s50, 3\ns_add_u32 s{sT}, s{sT}, s52")
    A(f"s_lshr_b32 s{sNQ}, s51, 3")
    A("s_waitcnt lgkmcnt(0)")
    srd(A, sWS, 8, 9, WS_SIZE)
    A(f"s_cmp_ge_u32 s{sWAVE}, 8")
    A(f"s_cbranch_scc1 {name}_gemm")
    Q1, Q2, K1, K2, VLO, VHI = 8, 12, 16, 20, 24, 28
    P, O, S0, S1 = 32, 40, 56, 72
    aK1, aK2, aVLO, aVHI = 88, 89, 90, 91
    lK1, lK2, lV = 92, 93, 94
    TQ, HF, TMP = 95, 96, 97
    sSLOT, sC, sHFM, sQT = 45, 46, 48, 47
    Sb = [S0, S1]
    A(f"v_and_b32 v{TQ}, 31, v{LANE}")
    A(f"v_lshrrev_b32 v{HF}, 5, v{LANE}")
    A(f"v_cmp_lt_u32 s[{sHFM}:{sHFM+1}], 31, v{LANE}")
    A(f"s_lshl_b32 s{sQT}, s{sQB}, 3\ns_add_u32 s{sQT}, s{sQT}, s{sWAVE}")
    A(f"v_lshlrev_b32 v{lK1}, 4, v{TQ}\nv_lshl_add_u32 v{lK1}, v{HF}, 9, v{lK1}")
    A(f"v_lshlrev_b32 v{lK2}, 3, v{TQ}\nv_add_u32 v{lK2}, 1024, v{lK2}")
    A(f"s_mul_i32 s50, s{sHEAD}, {Q_HEAD}\ns_mul_i32 s51, s{sQT}, {QK_TILE}\ns_add_u32 s50, s50, s51\ns_add_u32 s50, s50, {WS_Q}")
    A(f"buffer_load_dwordx4 {v(Q1,4)}, v{lK1}, s[{sWS}:{sWS+3}], s50 offen")
    A(f"buffer_load_dwordx2 {v(Q2,2)}, v{lK2}, s[{sWS}:{sWS+3}], s50 offen")
    A(f"v_and_b32 v2, 15, v{LANE}\nv_and_b32 v3, 3, v2\nv_lshrrev_b32 v2, 2, v2")
    A(f"v_bfe_u32 v4, v{LANE}, 4, 1")
    A("v_lshl_add_u32 v3, v4, 2, v3\nv_min_u32 v3, 5, v3")
    A(f"v_mul_u32_u24 v{lV}, {V_PLANE}, v3")
    A(f"v_lshl_add_u32 v2, v{HF}, 2, v2")
    A(f"v_lshl_add_u32 v{lV}, v2, 3, v{lV}")
    A(f"v_add_u32 v{lV}, {KV_VOFF}, v{lV}")
    A(f"v_mov_b32 v{aK1}, v{lK1}\nv_mov_b32 v{aK2}, v{lK2}\nv_mov_b32 v{aVLO}, v{lV}\nv_mov_b32 v{aVHI}, v{lV}")
    A(f"v_mov_b32 v{K2+2}, 0x3f80\nv_mov_b32 v{K2+3}, 0\nv_mov_b32 v{Q2+2}, 0\nv_mov_b32 v{Q2+3}, 0")
    for i in range(16): A(f"v_mov_b32 v{O+i}, 0")
    for i in range(4): A(f"v_mov_b32 v{VHI+i}, 0\nv_mov_b32 v{P+4+i}, 0")
    A("s_waitcnt vmcnt(0)")
    A(f"v_cndmask_b32 v{Q2}, v{Q2}, 0, s[{sHFM}:{sHFM+1}]" if False else f"v_cndmask_b32 v{Q2}, v{Q2}, v{Q2+3}, s[{sHFM}:{sHFM+1}]")
    A(f"v_cndmask_b32 v{Q2+1}, v{Q2+1}, v{Q2+3}, s[{sHFM}:{sHFM+1}]")
    A("s_barrier")
    stamp(1)
    A(f"ds_read_b128 {v(K1,4)}, v{aK1}")
    A(f"ds_read_b64 {v(K2,2)}, v{aK2}")
    A("s_waitcnt lgkmcnt(0)")
    A(f"v_mfma_f32_32x32x16_bf16 {v(S0,16)}, {v(K1,4)}, {v(Q1,4)}, 0")
    A(f"v_mfma_f32_32x32x16_bf16 {v(S0,16)}, {v(K2,4)}, {v(Q2,4)}, {v(S0,16)}")
    A("s_nop 15\ns_nop 3")
    A(f"v_max3_f32 v{TMP}, v{S0}, v{S0+1}, v{S0+2}")
    for i in range(3, 15, 2): A(f"v_max3_f32 v{TMP}, v{TMP}, v{S0+i}, v{S0+i+1}")
    A(f"v_max_f32 v{TMP}, v{TMP}, v{S0+15}")
    A(f"v_mov_b32 v{TMP+1}, v{TMP}")
    A("s_nop 1")
    A(f"v_permlane32_swap_b32 v{TMP}, v{TMP+1}")
    A("s_nop 1")
    A(f"v_max_f32 v{TMP}, v{TMP}, v{TMP+1}")
    A(f"v_sub_f32 v{TMP}, 0, v{TMP}")
    A(f"v_cvt_pk_bf16_f32 v{TMP}, v{TMP}, v{Q2+3}")
    A(f"v_cndmask_b32 v{Q2+2}, v{TMP}, v{Q2+3}, s[{sHFM}:{sHFM+1}]")
    A("s_nop 1")
    A(f"v_mfma_f32_32x32x16_bf16 {v(S0,16)}, {v(K1,4)}, {v(Q1,4)}, 0")
    A(f"v_mfma_f32_32x32x16_bf16 {v(S0,16)}, {v(K2,4)}, {v(Q2,4)}, {v(S0,16)}")
    A(f"ds_read_b128 {v(K1,4)}, v{aK1} offset:{QK_TILE}")
    A(f"ds_read_b64 {v(K2,2)}, v{aK2} offset:{QK_TILE}")
    def vrd(dst, areg, tile, m):
        return [f"ds_read_b64_tr_b16 {v(dst+2*j,2)}, v{areg} offset:{tile*V_TILE + (16*m+8*j)*8}" for j in range(2)]
    for o in vrd(VLO, aVLO, 0, 0): A(o)
    A(f"s_mov_b32 s{sSLOT}, {KVSLOT}")
    A(f"s_mov_b32 s{sC}, 0")
    A("s_waitcnt lgkmcnt(0)")
    A("s_nop 7")
    A(".p2align 6")
    A.label(f"{name}_aloop")
    def expcvt(Sx, i0, p0):
        for i in range(4): A(f"v_exp_f32 v{Sx+i0+i}, v{Sx+i0+i}")
        A(f"v_cvt_pk_bf16_f32 v{P+p0}, v{Sx+i0}, v{Sx+i0+1}")
        A(f"v_cvt_pk_bf16_f32 v{P+p0+1}, v{Sx+i0+2}, v{Sx+i0+3}")
    for t in range(8):
        Sc, Sn = Sb[t & 1], Sb[(t + 1) & 1]
        if t == 6:
            A("s_barrier")
            A(f"v_add_u32 v{aK1}, s{sSLOT}, v{lK1}\nv_add_u32 v{aK2}, s{sSLOT}, v{lK2}")
        if t == 7:
            A(f"v_add_u32 v{aVLO}, s{sSLOT}, v{lV}")
        kt = (t + 2) % 8
        A("s_waitcnt lgkmcnt(5)")
        A(f"v_mfma_f32_32x32x16_bf16 {v(Sn,16)}, {v(K1,4)}, {v(Q1,4)}, 0")
        A(f"ds_read_b128 {v(K1,4)}, v{aK1} offset:{kt*QK_TILE}")
        expcvt(Sc, 0, 0)
        A("s_waitcnt lgkmcnt(4)")
        A(f"v_mfma_f32_32x32x16_bf16 {v(O,16)}, {v(VHI,4)}, {v(P+4,4)}, {v(O,16)}")
        for o in vrd(VHI, aVHI, t, 1): A(o)
        expcvt(Sc, 4, 2)
        A("s_waitcnt lgkmcnt(5)")
        A(f"v_mfma_f32_32x32x16_bf16 {v(Sn,16)}, {v(K2,4)}, {v(Q2,4)}, {v(Sn,16)}")
        A(f"ds_read_b64 {v(K2,2)}, v{aK2} offset:{kt*QK_TILE}")
        expcvt(Sc, 8, 4)
        A("s_waitcnt lgkmcnt(4)")
        A(f"v_mfma_f32_32x32x16_bf16 {v(O,16)}, {v(VLO,4)}, {v(P,4)}, {v(O,16)}")
        for o in vrd(VLO, aVLO, (t + 1) % 8, 0): A(o)
        expcvt(Sc, 12, 6)
    A(f"v_add_u32 v{aVHI}, s{sSLOT}, v{lV}")
    A(f"s_add_u32 s{sSLOT}, s{sSLOT}, {KVSLOT}\ns_cmp_ge_u32 s{sSLOT}, {3*KVSLOT}\ns_cselect_b32 s{sSLOT}, 0, s{sSLOT}")
    A(f"s_add_u32 s{sC}, s{sC}, 1\ns_cmp_lt_u32 s{sC}, 8")
    A(f"s_cbranch_scc1 {name}_aloop")
    A("s_waitcnt lgkmcnt(0)")
    A(f"v_mfma_f32_32x32x16_bf16 {v(O,16)}, {v(VHI,4)}, {v(P+4,4)}, {v(O,16)}")
    stamp(2)
    A("s_nop 15\ns_nop 3")
    A(f"v_cndmask_b32 v{TMP}, v{O+12}, v{O+8}, s[{sHFM}:{sHFM+1}]")
    A(f"v_cmp_le_f32 vcc, {hex(f32bits(2.0**-60))}, v{TMP}")
    A(f"v_cmp_ge_f32 s[50:51], {hex(0)}, v{TMP}" if False else f"s_mov_b32 s52, {hex(f32bits(2.0**60))}")
    A(f"v_cmp_ge_f32 s[50:51], s52, v{TMP}")
    A("s_nop 1")
    A("s_and_b64 vcc, vcc, s[50:51]")
    A("s_cmp_eq_u64 vcc, exec")
    if force_fallback: A("s_cmp_eq_u32 s2, 0x7fffffff")
    A(f"s_cbranch_scc0 {name}_fallback")
    A.label(f"{name}_aepi")
    A(f"v_rcp_f32 v{TMP}, v{TMP}")
    A(f"s_mul_i32 s50, s{sQT}, 40960\ns_add_u32 s50, s50, {WS_O}")
    A(f"s_mul_i32 s51, s{sHEAD}, 20")
    A(f"v_lshl_add_u32 v2, v{HF}, 2, s51")
    for qd in range(3):
        if qd == 1: A("v_add_u32 v2, 8, v2")
        if qd == 2: A("v_add_u32 v2, 8, v2")
        A("v_lshrrev_b32 v3, 3, v2\nv_lshlrev_b32 v3, 9, v3")
        A("v_and_b32 v4, 4, v2\nv_lshl_add_u32 v3, v4, 1, v3")
        A(f"v_lshl_add_u32 v3, v{TQ}, 4, v3")
        for i in range(4): A(f"v_mul_f32 v{O+4*qd+i}, v{O+4*qd+i}, v{TMP}")
        A(f"v_cvt_pk_bf16_f32 v{P+2*qd}, v{O+4*qd}, v{O+4*qd+1}\nv_cvt_pk_bf16_f32 v{P+2*qd+1}, v{O+4*qd+2}, v{O+4*qd+3}")
        if qd == 2:
            A(f"s_andn2_b64 exec, exec, s[{sHFM}:{sHFM+1}]")
        A(f"buffer_store_dwordx2 {v(P+2*qd,2)}, v3, s[{sWS}:{sWS+3}], s50 offen")
    A("s_mov_b64 exec, -1")
    stamp_out(3, None)
    A(f"s_branch {name}_end")
    A.label(f"{name}_fallback")
    M, AL, VA0, VA1 = TMP + 1, TMP + 2, TMP + 3, TMP + 4
    A(f"v_mov_b32 v{Q2+2}, 0")
    for i in range(16): A(f"v_mov_b32 v{O+i}, 0")
    A(f"v_mov_b32 v{M}, 0xff7fffff")
    A(f"v_lshrrev_b32 v2, 2, v{TQ}\nv_min_u32 v2, 5, v2\nv_mul_u32_u24 v{VA0}, {V_PLANE}, v2")
    A(f"v_and_b32 v2, 3, v{TQ}\nv_lshl_add_u32 v{VA0}, v2, 1, v{VA0}\nv_lshl_add_u32 v{VA0}, v{HF}, 5, v{VA0}")
    A(f"v_add_u32 v{VA0}, {KV_VOFF}, v{VA0}")
    A(f"s_mul_i32 s53, s{sHEAD}, {KV_HEAD}\ns_add_u32 s53, s53, {WS_KV}")
    A("s_mov_b32 s54, 0")
    A.label(f"{name}_floop")
    A(f"s_lshr_b32 s50, s54, 3\ns_mul_i32 s50, s50, {KV_CHUNK}\ns_add_u32 s50, s50, s53\ns_and_b32 s51, s54, 7")
    A(f"s_mul_i32 s52, s51, {V_TILE}\ns_add_u32 s52, s52, s50")
    A(f"s_mul_i32 s51, s51, {QK_TILE}\ns_add_u32 s50, s50, s51")
    A(f"buffer_load_dwordx4 {v(K1,4)}, v{lK1}, s[{sWS}:{sWS+3}], s50 offen")
    A(f"buffer_load_dwordx2 {v(K2,2)}, v{lK2}, s[{sWS}:{sWS+3}], s50 offen")
    for m in range(2):
        dst = VLO if m == 0 else VHI
        for e in range(8):
            op = "buffer_load_short_d16" if e % 2 == 0 else "buffer_load_short_d16_hi"
            A(f"{op} v{dst+e//2}, v{VA0}, s[{sWS}:{sWS+3}], s52 offen offset:{(16*m + 8*(e>>2) + (e&3))*8}")
    A("s_waitcnt vmcnt(16)")
    A(f"v_mfma_f32_32x32x16_bf16 {v(S0,16)}, {v(K1,4)}, {v(Q1,4)}, 0")
    A(f"v_mfma_f32_32x32x16_bf16 {v(S0,16)}, {v(K2,4)}, {v(Q2,4)}, {v(S0,16)}")
    A("s_nop 15\ns_nop 3")
    A(f"v_max3_f32 v{AL}, v{S0}, v{S0+1}, v{M}")
    for i in range(2, 16, 2): A(f"v_max3_f32 v{AL}, v{AL}, v{S0+i}, v{S0+i+1}")
    A(f"v_mov_b32 v{VA1}, v{AL}")
    A("s_nop 1")
    A(f"v_permlane32_swap_b32 v{AL}, v{VA1}")
    A("s_nop 1")
    A(f"v_max_f32 v{VA1}, v{AL}, v{VA1}")
    A(f"v_sub_f32 v{AL}, v{M}, v{VA1}")
    A(f"v_exp_f32 v{AL}, v{AL}")
    A(f"v_mov_b32 v{M}, v{VA1}")
    for i in range(16): A(f"v_sub_f32 v{S0+i}, v{S0+i}, v{M}")
    for i in range(16): A(f"v_mul_f32 v{O+i}, v{O+i}, v{AL}")
    for g in range(4): expcvt(S0, 4 * g, 2 * g)
    A("s_waitcnt vmcnt(0)")
    A("s_nop 1")
    A(f"v_mfma_f32_32x32x16_bf16 {v(O,16)}, {v(VLO,4)}, {v(P,4)}, {v(O,16)}")
    A(f"v_mfma_f32_32x32x16_bf16 {v(O,16)}, {v(VHI,4)}, {v(P+4,4)}, {v(O,16)}")
    A("s_nop 15\ns_nop 3")
    A("s_add_u32 s54, s54, 1\ns_cmp_lt_u32 s54, 64")
    A(f"s_cbranch_scc1 {name}_floop")
    A(f"v_cndmask_b32 v{TMP}, v{O+12}, v{O+8}, s[{sHFM}:{sHFM+1}]")
    A(f"s_branch {name}_aepi")
    A.label(f"{name}_gemm")
    ACC, WFR, HFR = 8, 88, 108
    VD, VRD, VL16, VX, XR = 124, 129, 130, 131, 132
    sG, sKV, sKVL, sWO, sHO2, sLB, sI, sSL = 45, 46, 47, 48, 49, 52, 53, 54
    srd(A, sX, 4, 5, S * D * 2)
    srd(A, sWD, 6, 7, F * D * 2)
    A(f"s_sub_u32 s{sG}, s{sWAVE}, 8")
    A(f"v_lshlrev_b32 v{VL16}, 4, v{LANE}")
    A(f"s_mul_i32 s{sKV}, s{sHEAD}, {KV_HEAD}\ns_add_u32 s{sKV}, s{sKV}, {WS_KV}\ns_mul_i32 s{sKVL}, s{sG}, 6144\ns_add_u32 s{sKV}, s{sKV}, s{sKVL}")
    def kv_dma(slot_sreg):
        for i in range(6):
            if i % 4 == 0:
                A(f"s_add_u32 m0, s{slot_sreg}, {(i//4)*4096}" if i else f"s_mov_b32 m0, s{slot_sreg}")
                A(f"s_add_u32 s50, s{sKV}, {(i//4)*4096}")
            A(f"buffer_load_dwordx4 v{VL16}, s[{sWS}:{sWS+3}], s50 offen offset:{(i%4)*1024} lds")
        A(f"s_add_u32 s{sKV}, s{sKV}, {KV_CHUNK}")
    A(f"s_mov_b32 s{sSL}, s{sKVL}")
    kv_dma(sSL)
    gemm_lane_setup(A, LANE, None, VD, VRD)
    A(f"s_mul_i32 s{sLB}, s{sG}, {GW_WAVE}\ns_add_u32 s{sLB}, s{sLB}, {GW_BASE}")
    A(f"v_add_u32 v{VRD}, s{sLB}, v{VRD}")
    A(f"s_mul_i32 s{sWO}, s{sG}, {24*20480}\ns_mul_i32 s50, s{sNQ}, 320\ns_add_u32 s{sWO}, s{sWO}, s50")
    A(f"s_mul_i32 s{sHO2}, s{sT}, 96\ns_mul_i32 s50, s{sG}, 24\ns_add_u32 s{sHO2}, s{sHO2}, s50\ns_lshl_b32 s{sHO2}, s{sHO2}, 10\ns_add_u32 s{sHO2}, s{sHO2}, {WS_H}")
    def issue_stage(st, sw, sh):
        for i in range(5):
            A(f"s_add_u32 m0, s{sLB}, {st*GW_STAGE + i*1024}")
            A("s_nop 0")
            A(f"buffer_load_dwordx4 v{VD+i}, s[{sWD}:{sWD+3}], s{sw} offen lds")
        A(f"buffer_load_dwordx4 {v(HFR+4*st,4)}, v{VL16}, s[{sWS}:{sWS+3}], s{sh} offen")
        A(f"s_add_u32 s{sWO}, s{sWO}, 20480\ns_add_u32 s{sHO2}, s{sHO2}, 1024")
    for st in range(3): issue_stage(st, sWO, sHO2)
    for i in range(80): A(f"v_mov_b32 v{ACC+i}, 0")
    A(f"s_mov_b32 s{sI}, 0")
    A(f"s_add_u32 s{sSL}, s{sKVL}, {KVSLOT}")
    A("s_waitcnt vmcnt(18)")
    A("s_barrier")
    A(".p2align 6")
    A.label(f"{name}_gloop")
    kv_dma(sSL)
    A(f"s_add_u32 s{sSL}, s{sSL}, {KVSLOT}\ns_cmp_ge_u32 s{sSL}, {3*KVSLOT}\ns_cselect_b32 s50, {3*KVSLOT}, 0\ns_sub_u32 s{sSL}, s{sSL}, s50")
    for k4 in range(4):
        A(f"s_waitcnt vmcnt({18 if k4 < 3 else 12})")
        for t in range(5):
            for j in range(2):
                A(f"ds_read_b64_tr_b16 {v(WFR+4*t+2*j,2)}, v{VRD} offset:{k4*GW_STAGE + j*1280 + t*64}")
        if k4 >= 1:
            A(f"s_cmp_lt_u32 s{sI}, 5\ns_cselect_b32 s50, s{sWO}, 0x40000000\ns_cselect_b32 s51, s{sHO2}, 0x40000000")
            issue_stage((k4 + 3) % 4, 50, 51)
        else:
            issue_stage((k4 + 3) % 4, sWO, sHO2)
        for t in range(5):
            A(f"s_waitcnt lgkmcnt({8-2*t})")
            if not no_gemm:
                A(f"v_mfma_f32_32x32x16_bf16 {v(ACC+16*t,16)}, {v(WFR+4*t,4)}, {v(HFR+4*k4,4)}, {v(ACC+16*t,16)}")
    A("s_waitcnt vmcnt(24)")
    A(f"s_cmp_eq_u32 s{sI}, 5\ns_cbranch_scc0 {name}_gnw")
    A("s_waitcnt vmcnt(0)")
    A.label(f"{name}_gnw")
    A("s_barrier")
    A(f"s_add_u32 s{sI}, s{sI}, 1\ns_cmp_lt_u32 s{sI}, 6")
    A(f"s_cbranch_scc1 {name}_gloop")
    kv_dma(sSL)
    A(f"v_and_b32 v2, 31, v{LANE}\nv_lshrrev_b32 v3, 5, v{LANE}")
    A(f"s_lshl_b32 s50, s{sT}, 5\nv_add_u32 v2, s50, v2\ns_movk_i32 s50, 1280\nv_mul_lo_u32 v{VX}, v2, s50")
    A(f"v_lshl_add_u32 v{VX}, v3, 3, v{VX}")
    A(f"s_mul_i32 s50, s{sNQ}, 320\ns_lshl_b32 s51, s{sG}, 4\ns_add_u32 s50, s50, s51")
    for t in range(5):
        A(f"buffer_load_dwordx2 {v(XR+2*t,2)}, v{VX}, s[{sX}:{sX+3}], s50 offen offset:{t*64}")
    for aq in range(4):
        A(f"s_cmp_eq_u32 s{sG}, {aq}")
        A(f"s_cbranch_scc1 {name}_rw{aq}")
        A(f"s_sub_u32 s50, s{sG}, {aq+1}\ns_and_b32 s50, s50, 3\ns_mul_i32 s50, s50, 5120\ns_add_u32 s50, s50, {RED_BASE + aq*15360}")
        A(f"v_add_u32 v2, s50, v{VL16}")
        for t in range(5):
            A(f"ds_write_b128 v2, {v(ACC+16*t+4*aq,4)} offset:{t*1024}")
        A.label(f"{name}_rw{aq}")
    for aq in range(4):
        A(f"s_cmp_eq_u32 s{sG}, {aq}")
        A(f"s_cbranch_scc0 {name}_rm{aq}")
        for t in range(5):
            for i in range(4): A(f"v_mov_b32 v{WFR+4*t+i}, v{ACC+16*t+4*aq+i}")
        A.label(f"{name}_rm{aq}")
    A("s_waitcnt vmcnt(5) lgkmcnt(0)")
    A("s_barrier")
    A(f"s_mul_i32 s50, s{sG}, 15360\ns_add_u32 s50, s50, {RED_BASE}\nv_add_u32 v2, s50, v{VL16}")
    for sl in range(3):
        for t in range(5):
            A(f"ds_read_b128 {v(ACC+20*sl+4*t,4)}, v2 offset:{sl*5120+t*1024}")
    A("s_waitcnt vmcnt(0) lgkmcnt(0)")
    A("s_barrier")
    for sl in range(3):
        for i in range(20): A(f"v_add_f32 v{WFR+i}, v{WFR+i}, v{ACC+20*sl+i}")
    for t in range(5):
        for hlf in range(2):
            A(f"v_lshlrev_b32 v3, 16, v{XR+2*t+hlf}\nv_and_b32 v4, 0xffff0000, v{XR+2*t+hlf}")
            A(f"v_add_f32 v{WFR+4*t+2*hlf}, v{WFR+4*t+2*hlf}, v3\nv_add_f32 v{WFR+4*t+2*hlf+1}, v{WFR+4*t+2*hlf+1}, v4")
    A(f"s_mul_i32 s50, s{sT}, 20\ns_mul_i32 s51, s{sNQ}, 5\ns_add_u32 s50, s50, s51\ns_lshl_b32 s50, s50, 2\ns_add_u32 s50, s50, s{sG}\ns_lshl_b32 s50, s50, 10\ns_add_u32 s50, s50, {WS_Y}")
    for t in range(5):
        A(f"buffer_store_dwordx4 {v(WFR+4*t,4)}, v{VL16}, s[{sWS}:{sWS+3}], s50 offen")
        if t < 4: A("s_add_u32 s50, s50, 4096")
    stamp_out(1, None)
    A.label(f"{name}_end")
    A("s_waitcnt vmcnt(0)")
    A("s_endpgm")
    return A.text(), kernel_desc(name, 168, 168)
```

```python
from common import *
from k2 import gemm_lane_setup
NW = 4
KS = 40 // NW
K3_LDS = NW * KS * 5120 if NW * KS * 5120 <= 160 * 1024 else None
def gen_k3(name="k3_kernel"):
    A = Asm()
    A.raw(kernel_header(name))
    LANE = 1
    sWS, sWOs, sOUT = 24, 28, 32
    sG, sT, sNQ, sLB, sWO, sHO = 40, 41, 42, 43, 44, 45
    ACC, WFR, OFR = 8, 88, 108
    VD, VRD, VL16, VOUT, YR = 150, 155, 156, 157, 160
    NST = 7
    A("s_cmp_ge_u32 s2, 256")
    A(f"s_cbranch_scc1 {name}_end")
    A("s_load_dwordx2 s[4:5], s[0:1], 16")
    A("s_load_dwordx2 s[6:7], s[0:1], 56")
    A("s_load_dwordx2 s[8:9], s[0:1], 72")
    A(f"v_and_b32 v{LANE}, 63, v0")
    A("v_lshrrev_b32 v2, 6, v0")
    A("s_and_b32 s50, s2, 7\ns_lshr_b32 s51, s2, 3")
    A(f"v_readfirstlane_b32 s{sG}, v2")
    A(f"s_and_b32 s{sT}, s51, 7\ns_lshl_b32 s52, s50, 3\ns_add_u32 s{sT}, s{sT}, s52")
    A(f"s_lshr_b32 s{sNQ}, s51, 3")
    A(f"v_lshlrev_b32 v{VL16}, 4, v{LANE}")
    gemm_lane_setup(A, LANE, None, VD, VRD)
    A(f"s_mul_i32 s{sLB}, s{sG}, {NST*5120}")
    A(f"v_add_u32 v{VRD}, s{sLB}, v{VRD}")
    A(f"s_mul_i32 s{sWO}, s{sG}, {KS*20480}\ns_mul_i32 s50, s{sNQ}, 320\ns_add_u32 s{sWO}, s{sWO}, s50")
    A(f"s_mul_i32 s{sHO}, s{sT}, 40\ns_mul_i32 s50, s{sG}, {KS}\ns_add_u32 s{sHO}, s{sHO}, s50\ns_lshl_b32 s{sHO}, s{sHO}, 10\ns_add_u32 s{sHO}, s{sHO}, {WS_O}")
    A("s_waitcnt lgkmcnt(0)")
    srd(A, sWS, 8, 9, WS_SIZE)
    srd(A, sWOs, 4, 5, D * D * 2)
    srd(A, sOUT, 6, 7, S * D * 2)
    def issue(k):
        st = k % NST
        A(f"buffer_load_dwordx4 {v(OFR+4*k,4)}, v{VL16}, s[{sWS}:{sWS+3}], s{sHO} offen")
        for i in range(5):
            A(f"s_add_u32 m0, s{sLB}, {st*5120 + i*1024}")
            A("s_nop 0")
            A(f"buffer_load_dwordx4 v{VD+i}, s[{sWOs}:{sWOs+3}], s{sWO} offen lds")
        A(f"s_add_u32 s{sWO}, s{sWO}, 20480\ns_add_u32 s{sHO}, s{sHO}, 1024")
    for k in range(NST): issue(k)
    A(f"s_mul_i32 s50, s{sT}, 20\ns_mul_i32 s51, s{sNQ}, 5\ns_add_u32 s50, s50, s51\ns_lshl_b32 s50, s50, 2\ns_add_u32 s50, s50, s{sG}\ns_lshl_b32 s50, s50, 10\ns_add_u32 s50, s50, {WS_Y}")
    for t in range(5):
        A(f"buffer_load_dwordx4 {v(YR+4*t,4)}, v{VL16}, s[{sWS}:{sWS+3}], s50 offen")
        if t < 4: A("s_add_u32 s50, s50, 4096")
    for i in range(80): A(f"v_mov_b32 v{ACC+i}, 0")
    A(f"v_and_b32 v2, 31, v{LANE}\nv_lshrrev_b32 v3, 5, v{LANE}")
    A(f"s_lshl_b32 s50, s{sT}, 5\nv_add_u32 v2, s50, v2\ns_movk_i32 s50, 1280\nv_mul_lo_u32 v{VOUT}, v2, s50")
    A(f"v_lshl_add_u32 v{VOUT}, v3, 3, v{VOUT}")
    A(f"s_mul_i32 s50, s{sNQ}, 320\ns_lshl_b32 s51, s{sG}, 4\ns_add_u32 s50, s50, s51\nv_add_u32 v{VOUT}, s50, v{VOUT}")
    issued = NST
    order = [("k", k) for k in range(NST)] + [("y", 0)]
    for k in range(KS):
        idx = order.index(("k", k))
        n = sum(6 if o[0] == "k" else 5 for o in order[idx + 1:])
        A(f"s_waitcnt vmcnt({n})")
        st = k % NST
        for t in range(5):
            for j in range(2):
                A(f"ds_read_b64_tr_b16 {v(WFR+4*t+2*j,2)}, v{VRD} offset:{st*5120 + j*1280 + t*64}")
        for t in range(5):
            A(f"s_waitcnt lgkmcnt({8-2*t})")
            A(f"v_mfma_f32_32x32x16_bf16 {v(ACC+16*t,16)}, {v(WFR+4*t,4)}, {v(OFR+4*k,4)}, {v(ACC+16*t,16)}")
        if issued < KS:
            issue(issued); order.append(("k", issued)); issued += 1
    A("s_barrier")
    A("s_nop 7")
    for aq in range(4):
        A(f"s_cmp_eq_u32 s{sG}, {aq}")
        A(f"s_cbranch_scc1 {name}_rw{aq}")
        A(f"s_sub_u32 s50, s{sG}, {aq+1}\ns_and_b32 s50, s50, 3\ns_mul_i32 s50, s50, 5120\ns_add_u32 s50, s50, {aq*15360}")
        A(f"v_add_u32 v2, s50, v{VL16}")
        for t in range(5):
            A(f"ds_write_b128 v2, {v(ACC+16*t+4*aq,4)} offset:{t*1024}")
        A.label(f"{name}_rw{aq}")
    A("s_waitcnt vmcnt(0)")
    for aq in range(4):
        A(f"s_cmp_eq_u32 s{sG}, {aq}")
        A(f"s_cbranch_scc0 {name}_rm{aq}")
        for t in range(5):
            for i in range(4): A(f"v_add_f32 v{YR+4*t+i}, v{YR+4*t+i}, v{ACC+16*t+4*aq+i}")
        A.label(f"{name}_rm{aq}")
    A("s_waitcnt lgkmcnt(0)")
    A("s_barrier")
    A(f"s_mul_i32 s50, s{sG}, 15360\nv_add_u32 v2, s50, v{VL16}")
    for sl in range(3):
        for t in range(5):
            A(f"ds_read_b128 {v(ACC+20*sl+4*t,4)}, v2 offset:{sl*5120+t*1024}")
    for sl in range(3):
        A(f"s_waitcnt lgkmcnt({10-5*sl})")
        for i in range(20): A(f"v_add_f32 v{YR+i}, v{YR+i}, v{ACC+20*sl+i}")
    for t in range(5):
        A(f"v_cvt_pk_bf16_f32 v{WFR+2*t}, v{YR+4*t}, v{YR+4*t+1}\nv_cvt_pk_bf16_f32 v{WFR+2*t+1}, v{YR+4*t+2}, v{YR+4*t+3}")
        A(f"buffer_store_dwordx2 {v(WFR+2*t,2)}, v{VOUT}, s[{sOUT}:{sOUT+3}], 0 offen offset:{t*64}")
    A.label(f"{name}_end")
    A("s_waitcnt vmcnt(0)")
    A("s_endpgm")
    return A.text(), kernel_desc(name, 180, 180), NW * NST * 5120
```

```python
class Asm:
    def __init__(self):
        self.lines = []
    def __call__(self, s):
        for l in s.strip("\n").split("\n"):
            self.lines.append("    " + l.strip())
    def label(self, l):
        self.lines.append(l + ":")
    def comment(self, s):
        self.lines.append("    ; " + s)
    def raw(self, s):
        self.lines.append(s)
    def text(self):
        return "\n".join(self.lines) + "\n"

def v(i, n=1):
    return f"v{i}" if n == 1 else f"v[{i}:{i+n-1}]"
def a(i, n=1):
    return f"a{i}" if n == 1 else f"a[{i}:{i+n-1}]"
def s(i, n=1):
    return f"s{i}" if n == 1 else f"s[{i}:{i+n-1}]"

S, D, H, DH, F = 2048, 640, 32, 20, 1536
KA_X, KA_WQKV, KA_WO, KA_BX, KA_WG, KA_WU, KA_WD, KA_OUT, KA_DBG, KA_WS = 0, 8, 16, 24, 32, 40, 48, 56, 64, 72
QK_TILE = 1280
Q_HEAD = 64 * QK_TILE
WS_Q = 0
V_PLANE = 288
V_TILE = 1792
KV_VOFF = 8 * QK_TILE
KV_CHUNK = 24576
KV_HEAD = 8 * KV_CHUNK
WS_KV = WS_Q + H * Q_HEAD
QKV_T = 240 * 512
WS_QKV = 0
WS_H = WS_KV + H * KV_HEAD
WS_O = WS_H + S * F * 2
WS_Y = WS_O + S * D * 2
WS_XN = WS_Y + S * D * 4
WS_FLAG = WS_XN + S * D * 2
WS_END = WS_FLAG + 65536
WS_SIZE = 268435456

def kernel_header(name):
    return f""".globl {name}
.p2align 8
.type {name},@function
{name}:
"""
def kernel_desc(name, vgpr, accum, sgpr=102):
    return f""".amdhsa_kernel {name}
  .amdhsa_next_free_vgpr {vgpr}
  .amdhsa_next_free_sgpr {sgpr}
  .amdhsa_accum_offset {accum}
  .amdhsa_group_segment_fixed_size 0
  .amdhsa_kernarg_size 80
  .amdhsa_user_sgpr_count 2
  .amdhsa_user_sgpr_kernarg_segment_ptr 1
  .amdhsa_system_sgpr_workgroup_id_x 1
  .amdhsa_float_denorm_mode_32 3
.end_amdhsa_kernel
"""
def srd(A, d, lo, hi, size):
    A(f"s_mov_b32 s{d}, s{lo}")
    A(f"s_and_b32 s{d+1}, s{hi}, 0xffff")
    A(f"s_mov_b32 s{d+2}, {size}")
    A(f"s_mov_b32 s{d+3}, 0x00020000")

WS_RT = WS_END + (1 << 20)
def rt_begin(A, on):
    if on:
        A("s_memrealtime s[90:91]")
        A("s_memtime s[92:93]")
def rt_end(A, on, kidx, sWS, name):
    if not on: return
    A("s_cmp_ge_u32 s2, 256")
    A(f"s_cbranch_scc1 {name}_rtskip")
    A("s_waitcnt vmcnt(0) lgkmcnt(0)")
    A("s_memrealtime s[94:95]")
    A("s_memtime s[96:97]")
    A("v_lshrrev_b32 v2, 6, v0")
    A("s_waitcnt lgkmcnt(0)")
    A(f"s_lshl_b32 s98, s2, 8\ns_add_u32 s98, s98, {WS_RT + kidx * 65536}")
    A("v_lshlrev_b32 v2, 4, v2")
    A("v_mov_b32 v4, s90\nv_mov_b32 v5, s94\nv_mov_b32 v6, s92\nv_mov_b32 v7, s96")
    A("s_mov_b64 exec, -1")
    A(f"buffer_store_dwordx4 v[4:7], v2, s[{sWS}:{sWS+3}], s98 offen")
    A.label(f"{name}_rtskip")

def mk_stamp(A, on):
    def stamp(i):
        if not on: return
        A("s_memtime s[70:71]")
        A("s_waitcnt lgkmcnt(0)")
        A(f"s_mov_b32 s{76+i}, s70")
    return stamp
def stamp_dump(A, on, n, sWS, nwaves, name):
    if not on: return
    A("s_cmp_ge_u32 s2, 256")
    A(f"s_cbranch_scc1 {name}_sdskip")
    A("s_waitcnt vmcnt(0)")
    A("s_memtime s[70:71]")
    A("v_lshrrev_b32 v2, 6, v0")
    A("s_waitcnt lgkmcnt(0)")
    A(f"s_mov_b32 s{76+n}, s70")
    A(f"s_mul_i32 s70, s2, {nwaves*64}\ns_add_u32 s70, s70, {WS_END}")
    A("v_lshlrev_b32 v2, 6, v2")
    A("s_mov_b64 exec, -1")
    for i in range(n + 1):
        A(f"v_mov_b32 v3, s{76+i}")
        A(f"buffer_store_dword v3, v2, s[{sWS}:{sWS+3}], s70 offen offset:{4*i}")
    A.label(f"{name}_sdskip")
```

```python
from common import *
import struct
def f32bits(x): return struct.unpack("<I", struct.pack("<f", x))[0]
def gen_k0(name="k0_kernel", rt=False, prefetch=1):
    A = Asm()
    A.raw(kernel_header(name))
    sX, sWS, sP = 24, 28, 32
    X, DD, XC = 16, 40, 80
    A("s_cmp_ge_u32 s2, 256")
    A(f"s_cbranch_scc1 {name}_end")
    rt_begin(A, rt)
    A("s_load_dwordx16 s[4:19], s[0:1], 0")
    A("s_load_dwordx2 s[20:21], s[0:1], 72")
    A("v_and_b32 v1, 63, v0")
    A("v_lshrrev_b32 v2, 6, v0")
    A("v_and_b32 v3, 15, v1")
    A("v_readfirstlane_b32 s40, v2")
    A("v_lshrrev_b32 v4, 4, v1")
    A("s_lshl_b32 s41, s2, 3")
    A("s_and_b32 s42, s40, 1\ns_lshl_b32 s42, s42, 2\ns_add_u32 s41, s41, s42")
    A("v_add_u32 v5, s41, v4")
    A("s_movk_i32 s42, 1280")
    A("v_mul_lo_u32 v6, v5, s42")
    A("v_lshl_add_u32 v6, v3, 4, v6")
    A("v_lshlrev_b32 v14, 4, v1")
    A("s_waitcnt lgkmcnt(0)")
    srd(A, sX, 4, 5, S * D * 2)
    srd(A, sWS, 20, 21, WS_SIZE)
    A("s_cmp_ge_u32 s40, 2")
    A(f"s_cbranch_scc1 {name}_pf")
    for j in range(5):
        A(f"buffer_load_dwordx4 {v(X+4*j,4)}, v6, s[{sX}:{sX+3}], 0 offen offset:{j*256}")
    A.label(f"{name}_pf")
    if prefetch:
        A("s_lshl_b32 s43, s2, 2\ns_add_u32 s43, s43, s40\ns_lshl_b32 s43, s43, 10")
        for (lo, size) in ((6, D * 1920 * 2), (12, D * F * 2), (14, D * F * 2), (16, F * D * 2), (8, D * D * 2)):
            srd(A, sP, lo, lo + 1, size)
            for i in range((size + (1 << 20) - 1) >> 20):
                A(f"s_add_u32 s44, s43, {i << 20}")
                A(f"buffer_load_dwordx4 v[120:123], v14, s[{sP}:{sP+3}], s44 offen")
    npf = 3 + 2 + 2 + 2 + 1 if prefetch else 0
    A("s_cmp_ge_u32 s40, 2")
    A(f"s_cbranch_scc1 {name}_end")
    A("v_lshrrev_b32 v7, 5, v5\ns_mov_b32 s42, 40960\nv_mul_lo_u32 v7, v7, s42")
    A("v_and_b32 v8, 31, v5\nv_lshl_add_u32 v7, v8, 4, v7")
    A("v_lshl_add_u32 v7, v3, 9, v7")
    A(f"v_add_u32 v7, {WS_XN}, v7")
    A("v_mov_b32 v9, 0x3f803f80\nv_mov_b32 v10, 0\nv_mov_b32 v11, 0")
    A(f"s_waitcnt vmcnt({npf})")
    for i in range(20): A(f"v_dot2c_f32_bf16 v{10+(i&1)}, v{X+i}, v9")
    A("s_nop 3")
    A("v_add_f32 v10, v10, v11")
    def rowsum(r):
        for sh in (8, 4, 2, 1):
            A("s_nop 1")
            A(f"v_add_f32_dpp v{r}, v{r}, v{r} row_ror:{sh} row_mask:0xf bank_mask:0xf")
    rowsum(10)
    A(f"v_mul_f32 v10, {hex(f32bits(1.0/640))}, v10")
    A("v_cvt_pk_bf16_f32 v11, v10, v10\nv_and_b32 v11, 0xffff0000, v11")
    A("v_sub_f32 v10, v10, v11")
    A("v_mov_b32 v12, 0\nv_mov_b32 v13, 0")
    for i in range(20):
        A(f"v_lshlrev_b32 v{DD+2*i}, 16, v{X+i}\nv_and_b32 v{DD+2*i+1}, 0xffff0000, v{X+i}")
        A(f"v_sub_f32 v{DD+2*i}, v{DD+2*i}, v11\nv_sub_f32 v{DD+2*i+1}, v{DD+2*i+1}, v11")
        A(f"v_fmac_f32 v12, v{DD+2*i}, v{DD+2*i}\nv_fmac_f32 v13, v{DD+2*i+1}, v{DD+2*i+1}")
        A(f"v_cvt_pk_bf16_f32 v{XC+i}, v{DD+2*i}, v{DD+2*i+1}")
    A("v_add_f32 v12, v12, v13")
    rowsum(12)
    A(f"v_mul_f32 v12, {hex(f32bits(1.0/640))}, v12")
    A("v_fma_f32 v12, -v10, v10, v12")
    A("v_max_f32 v12, 0, v12")
    A("v_cvt_pk_bf16_f32 v12, v12, v12\nv_lshlrev_b32 v12, 16, v12")
    A(f"v_add_f32 v12, {hex(f32bits(1e-5))}, v12")
    A("v_cvt_pk_bf16_f32 v12, v12, v12\nv_lshlrev_b32 v12, 16, v12")
    A("v_sqrt_f32 v12, v12")
    A("s_nop 0")
    A("v_cvt_pk_bf16_f32 v12, v12, v12\nv_lshlrev_b32 v12, 16, v12")
    A("v_rcp_f32 v13, v12")
    A("s_nop 0")
    A("v_fma_f32 v10, -v12, v13, 1.0\nv_fma_f32 v13, v10, v13, v13")
    for i in range(20):
        A(f"v_lshlrev_b32 v{DD+2*i}, 16, v{XC+i}\nv_and_b32 v{DD+2*i+1}, 0xffff0000, v{XC+i}")
        A(f"v_mul_f32 v{DD+2*i}, v{DD+2*i}, v13\nv_mul_f32 v{DD+2*i+1}, v{DD+2*i+1}, v13")
        A(f"v_cvt_pk_bf16_f32 v{X+i}, v{DD+2*i}, v{DD+2*i+1}")
    for j in range(5):
        if j: A("v_add_u32 v7, 8192, v7")
        A(f"buffer_store_dwordx4 {v(X+4*j,4)}, v7, s[{sWS}:{sWS+3}], 0 offen")
    A.label(f"{name}_end")
    rt_end(A, rt, 3, sWS, name)
    A("s_endpgm")
    return A.text(), kernel_desc(name, 128, 128)
```

```python
from common import *
import struct
def f32bits(x): return struct.unpack("<I", struct.pack("<f", x))[0]

NSLOT = 6
P1OFF = 10272
SLOT = 21536
XC_BASE = NSLOT * SLOT
ST_BASE = XC_BASE + 16384
K1_LDS = ST_BASE + 2048
XS_BASE = 2 * SLOT

def gen_k1(name="k1_kernel", rt=False, Dahead=6, map_mode=0, stamps=False, exp=0, rotate=True, prefetch=True, plan=2, wait_every=2, wmode=0, fine=0, nt=0, perm=1):
    dma_gaps, cent_gaps = {0: ((9, 0, 1), (4, 5, 6)), 1: ((0, 1, 2), (4, 5, 6)), 2: ((8, 9, 0), (4, 5, 6)), 3: ((9, 0, 1), (5, 6, 7)), 4: ((5, 7, 9), (4, 6, 6)), 5: ((9, 0, 1), (4, 4, 5))}[plan]
    A = Asm()
    def stamp(i):
        if not stamps: return
        A(f"s_memtime s[70:71]")
        A("s_waitcnt lgkmcnt(0)")
        A(f"s_mov_b32 s{72+i}, s70")
    fcount = [0]
    NT = ' nt' if nt else ''
    def fstamp():
        if not fine: return
        A("s_memtime s[70:71]")
        A("s_waitcnt lgkmcnt(0)")
        A(f"s_mov_b32 s{90+fcount[0]}, s70"); fcount[0] += 1
    A.raw(kernel_header(name))
    WF = 24
    X = 64
    XC = 144
    T = 152
    MF, RD, LP, XRD, XWR = 160, 161, 162, 163, 164
    DMA = 165
    SX, SXX = 168, 169
    XO = 8
    LANE = 1
    sX, sW, sWS = 24, 28, 32
    sWAVE, sMB, sNB, sLDW, sDOFF, sSTEP, sWR, sRD, sC, sXI = 40, 41, 42, 43, 44, 45, 47, 48, 49, 46
    sM0 = 52
    sTG, sPH = 55, 56
    sOWN0, sOWN1 = 57, 58
    sWRC = 68
    sROT, sCOL, sTAU = 69, 65, 89
    sXB = 59
    sROW0 = 62
    sHS, sHO = 63, 64
    sHFM = 66

    A(f"s_cmp_ge_u32 s2, 256")
    A(f"s_cbranch_scc1 {name}_end")
    rt_begin(A, rt)
    stamp(0)
    A("s_load_dwordx16 s[4:19], s[0:1], 0")
    A("s_load_dwordx4 s[20:23], s[0:1], 64")
    A(f"v_and_b32 v{LANE}, 63, v0")
    A("v_lshrrev_b32 v2, 6, v0")
    A("s_and_b32 s50, s2, 7")
    A("s_lshr_b32 s51, s2, 3")
    A(f"v_readfirstlane_b32 s{sWAVE}, v2")
    if map_mode == 0:
        A(f"s_and_b32 s{sMB}, s50, 1\ns_lshl_b32 s{sMB}, s{sMB}, 3\ns_and_b32 s60, s51, 7\ns_add_u32 s{sMB}, s{sMB}, s60")
        A(f"s_lshr_b32 s{sNB}, s50, 1\ns_lshl_b32 s{sNB}, s{sNB}, 2\ns_lshr_b32 s60, s51, 3\ns_add_u32 s{sNB}, s{sNB}, s60")
    else:
        A(f"s_and_b32 s{sMB}, s50, 3\ns_lshl_b32 s{sMB}, s{sMB}, 2\ns_and_b32 s60, s51, 3\ns_add_u32 s{sMB}, s{sMB}, s60")
        A(f"s_lshr_b32 s{sNB}, s50, 2\ns_lshl_b32 s{sNB}, s{sNB}, 3\ns_lshr_b32 s60, s51, 2\ns_add_u32 s{sNB}, s{sNB}, s60")
    if perm:
        order = [0, 1, 6, 7, 2, 3, 8, 9, 4, 10, 11, 12, 5, 13, 14, 15] if map_mode == 0 else [0, 1, 2, 6, 7, 8, 9, 10, 3, 4, 5, 11, 12, 13, 14, 15]
        tab = sum(o << (4 * i) for i, o in enumerate(order))
        A(f"s_mov_b32 s60, {hex(tab & 0xffffffff)}\ns_mov_b32 s61, {hex(tab >> 32)}\ns_lshl_b32 s{sNB}, s{sNB}, 2\ns_lshr_b64 s[60:61], s[60:61], s{sNB}\ns_and_b32 s{sNB}, s60, 15")
    A(f"s_and_b32 s{sTG}, s{sWAVE}, 3\ns_lshr_b32 s{sPH}, s{sWAVE}, 2")
    A(f"s_lshl_b32 s{sROW0}, s{sMB}, 7\ns_lshl_b32 s60, s{sTG}, 5\ns_add_u32 s{sROW0}, s{sROW0}, s60")
    A(f"s_add_u32 s60, s{sMB}, s{sNB}\ns_mul_i32 s61, s60, 52\ns_lshr_b32 s61, s61, 8\ns_mul_i32 s61, s61, 5\ns_sub_u32 s{sROT}, s60, s61")
    if not rotate: A(f"s_mov_b32 s{sROT}, 0")
    sR = 84
    A(f"s_lshl_b32 s{sR}, s{sROT}, 8")
    for r in range(1, 5):
        A(f"s_add_u32 s{sR+r}, s{sR+r-1}, 256\ns_cmp_ge_u32 s{sR+r}, 1280\ns_cselect_b32 s60, 1280, 0\ns_sub_u32 s{sR+r}, s{sR+r}, s60")
    A(f"v_lshrrev_b32 v2, 3, v{LANE}")
    A(f"v_add_u32 v3, s{sROW0}, v2")
    A("s_movk_i32 s60, 1280")
    A("v_mul_lo_u32 v3, v3, s60")
    A(f"s_lshl_b32 s60, s{sPH}, 7")
    A("v_add_u32 v3, s60, v3")
    A(f"v_and_b32 v4, 7, v{LANE}")
    A(f"v_lshrrev_b32 v5, 4, v{LANE}")
    A("v_xor_b32 v4, v4, v5")
    A("v_lshl_add_u32 v8, v4, 4, v3")
    A("v_xor_b32 v4, 4, v4")
    A("v_lshl_add_u32 v9, v4, 4, v3")
    A("v_add_u32 v9, 10240, v9")
    A("v_add_u32 v10, 20480, v8")
    A("v_add_u32 v11, 20480, v9")
    A(f"s_mul_i32 s83, s{sWAVE}, 12288\ns_add_u32 s83, s83, {XS_BASE}")
    A("s_waitcnt lgkmcnt(0)")
    fstamp()
    srd(A, sX, 4, 5, S * D * 2)
    def xdma(r):
        for u in range(4):
            A(f"s_add_u32 m0, s83, {(r%3)*4096 + u*1024}")
            A("s_nop 0")
            A(f"buffer_load_dwordx4 v{8+u}, s[{sX}:{sX+3}], s{sR+r} offen lds")
    for r in range(3): xdma(r)
    fstamp()
    srd(A, sWS, 22, 23, WS_SIZE)
    A(f"s_cmp_lt_u32 s{sNB}, 6")
    A(f"s_cbranch_scc0 {name}_gu_src")
    A(f"s_mov_b32 s{sW}, s6\ns_and_b32 s{sW+1}, s7, 0xffff\ns_mov_b32 s{sW+2}, {D*1920*2}")
    A(f"s_movk_i32 s{sLDW}, 3840")
    A(f"s_mul_i32 s{sDOFF}, s{sNB}, 640\ns_mul_i32 s51, s{sPH}, 320\ns_add_u32 s{sDOFF}, s{sDOFF}, s51")
    A(f"s_branch {name}_src_done")
    A.label(f"{name}_gu_src")
    A(f"s_cmp_eq_u32 s{sPH}, 0")
    A(f"s_cselect_b32 s{sW}, s12, s14\ns_cselect_b32 s{sW+1}, s13, s15")
    A(f"s_and_b32 s{sW+1}, s{sW+1}, 0xffff\ns_mov_b32 s{sW+2}, {D*F*2}")
    A(f"s_movk_i32 s{sLDW}, 3072")
    A(f"s_sub_u32 s{sDOFF}, s{sNB}, 6\ns_mul_i32 s{sDOFF}, s{sDOFF}, 320")
    A.label(f"{name}_src_done")
    A(f"s_mov_b32 s{sW+3}, 0x00020000")
    A(f"s_mov_b32 s{sCOL}, s{sDOFF}")
    A(f"s_lshl_b32 s{sTAU}, s{sROT}, 2")
    def doff_ops():
        return [f"s_lshr_b32 s60, s{sTAU}, 2", "s_lshl_b32 s60, s60, 7", f"s_and_b32 s61, s{sTAU}, 1", "s_lshl_b32 s61, s61, 6", "s_add_u32 s60, s60, s61",
                f"s_and_b32 s61, s{sTAU}, 2", "s_lshl_b32 s61, s61, 4", "s_add_u32 s60, s60, s61", f"s_mul_i32 s60, s60, s{sLDW}", f"s_add_u32 s{sDOFF}, s{sCOL}, s60",
                f"s_add_u32 s{sTAU}, s{sTAU}, 1", f"s_cmp_ge_u32 s{sTAU}, 20", f"s_cselect_b32 s{sTAU}, 0, s{sTAU}"]
    A(f"s_mul_i32 s51, s{sTG}, 192")
    A("s_movk_i32 s60, 3277")
    A(f"s_mul_i32 s50, s{sPH}, {P1OFF}")
    A(f"s_mul_i32 s61, s{sTG}, 3072\ns_add_u32 s50, s50, s61")
    for j in range(3):
        A(f"v_add_u32 v5, s51, v{LANE}")
        if j: A(f"v_add_u32 v5, {j*64}, v5")
        A("v_mul_lo_u32 v6, v5, s60")
        A("v_lshrrev_b32 v6, 16, v6")
        A("v_mul_u32_u24 v7, 20, v6")
        A("v_sub_u32 v7, v5, v7")
        A(f"v_mul_lo_u32 v6, v6, s{sLDW}")
        A(f"v_lshl_add_u32 v{DMA+j}, v7, 4, v6")
        A(f"s_add_u32 s{sM0+j}, s50, {j*1024}")
        if j > 0:
            A(f"s_cmp_eq_u32 s{sTG}, 3")
            A(f"s_cselect_b32 s{sM0+j}, 20512, s{sM0+j}")
            A(f"s_cselect_b32 s61, 0x7ff00000, 0")
            A(f"v_or_b32 v{DMA+j}, s61, v{DMA+j}")
    def dma_chunk_static(c):
        for o in doff_ops(): A(o)
        for j in range(3):
            A(f"s_add_u32 m0, s{sM0+j}, {c*SLOT}")
            A("s_nop 0")
            A(f"buffer_load_dwordx4 v{DMA+j}, s[{sW}:{sW+3}], s{sDOFF} offen lds")
    for c in range(2): dma_chunk_static(c)
    stamp(1)
    A(f"v_and_b32 v6, 31, v{LANE}")
    A(f"v_lshrrev_b32 v7, 5, v{LANE}")
    A("v_bfe_u32 v5, v6, 1, 3\nv_xor_b32 v5, v5, v7")
    A("v_lshlrev_b32 v20, 7, v6\nv_add_u32 v20, s83, v20")
    for sp in range(4):
        A(f"v_xor_b32 v4, {2*sp}, v5\nv_lshl_add_u32 v{16+sp}, v4, 4, v20")
    A(f"v_cmp_lt_u32 s[{sHFM}:{sHFM+1}], 31, v{LANE}")
    A(f"v_and_b32 v21, 15, v{LANE}")
    A("v_lshrrev_b32 v22, 2, v21")
    A("v_lshl_add_u32 v22, v7, 3, v22")
    A(f"v_mul_u32_u24 v{LP}, 320, v22")
    A("v_and_b32 v22, 3, v21")
    A(f"v_lshl_add_u32 v{LP}, v22, 3, v{LP}")
    A(f"v_bfe_u32 v22, v{LANE}, 4, 1")
    A(f"v_mul_u32_u24 v22, {P1OFF}, v22")
    A(f"v_add_u32 v{LP}, v22, v{LP}")
    A(f"s_mul_i32 s60, s{sPH}, 160")
    A(f"v_add_u32 v{LP}, s60, v{LP}")
    A(f"v_mov_b32 v{RD}, v{LP}")
    A(f"s_lshl_b32 s60, s{sTG}, 12\ns_add_u32 s60, s60, {XC_BASE}")
    A(f"v_lshlrev_b32 v{XRD}, 4, v{LANE}")
    A(f"v_add_u32 v{XRD}, s60, v{XRD}")
    A("v_mov_b32 v21, 0x3f803f80")
    for i in range(8): A(f"v_mov_b32 v{T+i}, 0")
    for i in range(80): A(f"v_accvgpr_write_b32 a{i}, 0")
    for r in range(5):
        if r == 0: fstamp()
        A(f"s_waitcnt vmcnt({[14, 14, 14, 4, 0][r]})")
        fstamp()
        for sp in range(4):
            A(f"ds_read_b128 {v(X+16*r+4*sp,4)}, v{16+sp} offset:{(r%3)*4096}")
        if r > 0:
            for i in range(16):
                A(f"v_dot2c_f32_bf16 v{T+(i&3)}, v{X+16*(r-1)+i}, v21")
                A(f"v_dot2c_f32_bf16 v{T+4+(i&3)}, v{X+16*(r-1)+i}, v{X+16*(r-1)+i}")
        A("s_waitcnt lgkmcnt(0)")
        if r < 2: xdma(r + 3)
    for i in range(16):
        A(f"v_dot2c_f32_bf16 v{T+(i&3)}, v{X+64+i}, v21")
        A(f"v_dot2c_f32_bf16 v{T+4+(i&3)}, v{X+64+i}, v{X+64+i}")
    A(f"s_lshl_b32 s60, s{sTG}, 9\ns_add_u32 s60, s60, {ST_BASE}")
    A("v_lshlrev_b32 v22, 3, v6\nv_add_u32 v22, s60, v22")
    A(f"s_lshl_b32 s61, s{sPH}, 8\nv_add_u32 v23, s61, v22")
    A(f"v_add_f32 v{T}, v{T}, v{T+1}\nv_add_f32 v{T+2}, v{T+2}, v{T+3}\nv_add_f32 v{T+4}, v{T+4}, v{T+5}\nv_add_f32 v{T+6}, v{T+6}, v{T+7}")
    A(f"v_add_f32 v{T}, v{T}, v{T+2}\nv_add_f32 v{T+4}, v{T+4}, v{T+6}")
    A(f"v_mov_b32 v{T+1}, v{T}\nv_mov_b32 v{T+5}, v{T+4}")
    A("s_nop 1")
    A(f"v_permlane32_swap_b32 v{T}, v{T+1}\nv_permlane32_swap_b32 v{T+4}, v{T+5}")
    A("s_nop 1")
    A(f"v_add_f32 v{T}, v{T}, v{T+1}\nv_add_f32 v{T+1}, v{T+4}, v{T+5}")
    A(f"ds_write_b64 v23, {v(T,2)}")
    A("s_waitcnt lgkmcnt(0)")
    fstamp()
    A("s_barrier")
    fstamp()
    A(f"ds_read_b64 {v(T,2)}, v22\nds_read_b64 {v(T+2,2)}, v22 offset:256")
    for c in (2, 3, 4): dma_chunk_static(c)
    if prefetch:
        A(f"s_lshl_b32 s60, s2, 3\ns_add_u32 s60, s60, s{sWAVE}\ns_lshl_b32 s60, s60, 10")
        A(f"v_lshlrev_b32 v20, 4, v{LANE}")
        srd(A, 36, 16, 17, F * D * 2)
        A(f"buffer_load_dwordx4 v[16:19], v20, s[36:39], s60 offen")
        srd(A, 36, 8, 9, D * D * 2)
        A(f"buffer_load_dwordx4 v[16:19], v20, s[36:39], s60 offen")
    A("s_waitcnt lgkmcnt(0)")
    stamp(2)
    A(f"v_add_f32 v{SX}, v{T}, v{T+2}\nv_add_f32 v{SXX}, v{T+1}, v{T+3}")
    A(f"v_mul_f32 v{SX}, {hex(f32bits(1.0/640))}, v{SX}")
    A(f"v_cvt_pk_bf16_f32 v{T+1}, v{SX}, v{SX}")
    A(f"v_and_b32 v{MF}, 0xffff0000, v{T+1}")
    def centre4(src, idx, dst):
        w1 = ([f"s_set_gpr_idx_on s{sXI}, 0x2"] if idx else []) + \
             sum([[f"v_lshlrev_b32 v{T+2*j}, 16, v{src+j}", f"v_and_b32 v{T+2*j+1}, 0xffff0000, v{src+j}"] for j in range(4)], []) + \
             (["s_set_gpr_idx_off"] if idx else [])
        rest = []
        for j in range(4):
            rest += [f"v_sub_f32 v{T+2*j}, v{T+2*j}, v{MF}", f"v_sub_f32 v{T+2*j+1}, v{T+2*j+1}, v{MF}",
                     f"v_cvt_pk_bf16_f32 v{dst+j}, v{T+2*j}, v{T+2*j+1}"]
        return w1, rest
    A(f"s_lshl_b32 s60, s{sPH}, 11\nv_add_u32 v{XWR}, s60, v{XRD}")
    for ks in range(2):
        w1, rest = centre4(X + 4 * ks, False, XO + 4)
        for o in w1 + rest: A(o)
        A(f"ds_write_b128 v{XWR}, {v(XO+4,4)} offset:{ks*1024}")
    w1, rest = centre4(X + 8, False, XO)
    for o in w1 + rest: A(o)
    sGB, sK64, sK32, sK96, sGI = sDOFF, 57, 58, 59, sTAU
    A(f"s_add_u32 s{sGI}, s{sROT}, 1\ns_cmp_ge_u32 s{sGI}, 5\ns_cselect_b32 s{sGI}, 0, s{sGI}")
    A(f"s_lshl_b32 s{sK64}, s{sLDW}, 6\ns_lshl_b32 s{sK32}, s{sLDW}, 5\ns_add_u32 s{sK96}, s{sK64}, s{sK32}\ns_lshl_b32 s{sSTEP}, s{sLDW}, 7")
    A(f"s_mul_i32 s{sGB}, s{sGI}, s{sSTEP}\ns_add_u32 s{sGB}, s{sGB}, s{sCOL}")
    A(f"s_mov_b32 s{sC}, 0")
    A(f"s_mov_b32 s{sWR}, {5*SLOT}")
    A(f"s_mov_b32 s{sRD}, 0")
    A(f"s_mov_b32 s{sXI}, 0")
    A(f"s_mov_b32 s50, 0x40000000")
    A(f"s_waitcnt vmcnt({14 if prefetch else 12}) lgkmcnt(0)")
    A("s_barrier")
    stamp(3)
    def rd_ops(m):
        ks, tp = divmod(m % 10, 5)
        buf = WF + 4 * (m % 10)
        return [f"ds_read_b64_tr_b16 {v(buf+2*j,2)}, v{RD} offset:{(16*ks+4*j)*320 + tp*32}" for j in range(2)]
    assert Dahead == 6
    for m in range(Dahead):
        for o in rd_ops(m): A(o)
        if m == 0: A(f"ds_read_b128 {v(XC,4)}, v{XRD}")
    A(f"ds_read_b128 {v(XC+4,4)}, v{XRD} offset:1024")
    A("s_waitcnt lgkmcnt(0)")
    def emit_loop(ph):
        lab = f"{name}_loop{ph}"
        stream = []
        for i in range(4):
            e = (i + ph) & 1
            fill = {g: [] for g in range(10)}
            j = (i + 1) & 3
            ksrc = {0: None, 1: sK64, 2: sK32, 3: sK96}[j]
            pre = []
            if j == 0:
                pre += [f"s_add_u32 s{sGI}, s{sGI}, 1", f"s_cmp_ge_u32 s{sGI}, 5", f"s_cselect_b32 s{sGI}, 0, s{sGI}",
                        f"s_mul_i32 s{sGB}, s{sGI}, s{sSTEP}", f"s_add_u32 s{sGB}, s{sGB}, s{sCOL}",
                        f"s_cmp_lt_u32 s{sC}, 3", f"s_cselect_b32 s{sGB}, s{sGB}, 0x40000000"]
            fill[2] += pre
            fill[3] += (["s_waitcnt vmcnt(9)"] if not exp & 16 else []) + ["s_barrier"]
            if i == 0: pass
            fill[3] += [f"s_mov_b32 s{sWR}, s{sWRC}", f"s_mov_b32 s{sWRC}, s{sRD}",
                        f"s_add_u32 s{sRD}, s{sRD}, {SLOT}", f"s_cmp_ge_u32 s{sRD}, {NSLOT*SLOT}", f"s_cselect_b32 s{sRD}, 0, s{sRD}",
                        f"v_add_u32 v{RD}, s{sRD}, v{LP}"]
            fill[4] += [f"s_add_u32 s50, s{sGB}, s{ksrc}" if ksrc else f"s_mov_b32 s50, s{sGB}"]
            dg = dma_gaps
            for jj in range(3):
                if exp & 1: continue
                fill[dg[jj]] = [("m0", f"s_add_u32 m0, s{sWR}, s{sM0+jj}"), ("dma", f"buffer_load_dwordx4 v{DMA+jj}, s[{sW}:{sW+3}], s50 offen lds")] + fill[dg[jj]]
            raw = X + 12 - 4 * ph + 4 * i
            w1, r1 = centre4(raw, True, XO + (0 if e else 4))
            cg = cent_gaps
            if not exp & 4:
                fill[cg[0]] += w1
                fill[cg[1]] += r1[:6]
                fill[cg[2]] += r1[6:]
            if e == 0 and not exp & 8:
                if wmode == 0:
                    fill[cg[2]] += [f"ds_write_b128 v{XWR}, {v(XO,4)}", f"ds_write_b128 v{XWR}, {v(XO+4,4)} offset:1024"]
                elif wmode == 1:
                    fill[4] = [f"ds_write_b128 v{XWR}, {v(XO,4)}"] + fill[4]
                    fill[cg[2] + 1] += [f"ds_write_b128 v{XWR}, {v(XO+4,4)} offset:1024"]
                elif wmode == 2:
                    fill[4] = [f"ds_write_b64 v{XWR}, {v(XO,2)}"] + fill[4]
                    fill[5] = [f"ds_write_b64 v{XWR}, {v(XO+2,2)} offset:8"] + fill[5]
                    fill[cg[2]] += [f"ds_write_b64 v{XWR}, {v(XO+4,2)} offset:1024"]
                    fill[cg[2] + 1] += [f"ds_write_b64 v{XWR}, {v(XO+6,2)} offset:1032"]
                elif wmode == 3:
                    fill[4] = [f"ds_write2_b64 v{XWR}, {v(XO,2)}, {v(XO+2,2)} offset0:0 offset1:1"] + fill[4]
                    fill[cg[2] + 1] += [f"ds_write2_b64 v{XWR}, {v(XO+4,2)}, {v(XO+6,2)} offset0:128 offset1:129"]
            xb = ((i + 1) & 1) * 2048
            xrd = {4: f"ds_read_b128 {v(XC,4)}, v{XRD} offset:{xb}", 9: f"ds_read_b128 {v(XC+4,4)}, v{XRD} offset:{xb+1024}"}
            if i == 3:
                fill[9] += [f"s_add_u32 s{sXI}, s{sXI}, 16", f"s_add_u32 s{sC}, s{sC}, 1", f"s_cmp_lt_u32 s{sC}, 5", f"s_cbranch_scc1 {lab}"]
            for m in range(10):
                ks, tp = divmod(m, 5)
                stream.append(("mfma", (i, m), f"v_mfma_f32_32x32x16_bf16 {a(16*tp,16)}, {v(WF+4*m,4)}, {v(XC+4*ks,4)}, {a(16*tp,16)}"))
                m0s = [o for o in fill[m] if isinstance(o, tuple) and o[0] == "m0"]
                rds = rd_ops(m + Dahead)
                tgt = ((i + (m + Dahead) // 10) % 4, (m + Dahead) % 10)
                first = True
                if m0s: stream.append(("other", None, m0s[0][1]))
                for o in rds: stream.append(("lds", ("w",) + tgt, o))
                if m in xrd: stream.append(("lds", ("x", (i + 1) % 4, 0 if m == 4 else 1), xrd[m]))
                seen_m0 = 0
                for o in fill[m]:
                    if isinstance(o, tuple):
                        if o[0] == "m0":
                            seen_m0 += 1
                            if seen_m0 == 1: continue
                            stream.append(("other", None, o[1])); stream.append(("other", None, "s_nop 0"))
                        else: stream.append(("other", None, o[1]))
                    elif o.startswith("ds_"): stream.append(("lds", ("st",), o))
                    elif exp & 2 and o == "s_barrier": continue
                    else: stream.append(("other", None, o))
        A(".p2align 6")
        A.label(lab)
        L = len(stream)
        full = stream + stream
        def need_n(pos, tag):
            p = max(q for q in range(pos) if full[q][0] == "lds" and full[q][1] == tag)
            return sum(1 for q in range(p + 1, pos) if full[q][0] == "lds")
        for q, (kind, tag, txt) in enumerate(stream):
            if kind == "mfma":
                i, m = tag
                if m % wait_every == 0:
                    ns = []
                    for mm in range(m, min(m + wait_every, 10)):
                        ns += [need_n(L + q, ("w", i, mm)), need_n(L + q, ("x", i, mm // 5))]
                    A(f"s_waitcnt lgkmcnt({min(min(ns), 15)})")
            A(txt)
    A(f"s_mov_b32 s{sWRC}, {5*SLOT}")
    if exp & 32: A(f"v_lshlrev_b32 v{XWR}, 4, v{LANE}\nv_add_u32 v{XWR}, {ST_BASE}, v{XWR}")
    A(f"s_cmp_eq_u32 s{sPH}, 0")
    A(f"s_cbranch_scc0 {name}_loop1")
    emit_loop(0)
    A(f"s_branch {name}_done")
    emit_loop(1)
    A.label(f"{name}_done")
    A("s_waitcnt lgkmcnt(0)")
    stamp(4)
    A(f"v_mul_f32 v{T}, {hex(f32bits(1.0/640))}, v{SXX}")
    A(f"v_fma_f32 v{T}, -v{SX}, v{SX}, v{T}")
    A(f"v_max_f32 v{T}, 0, v{T}")
    A(f"v_cvt_pk_bf16_f32 v{T}, v{T}, v{T}\nv_lshlrev_b32 v{T}, 16, v{T}")
    A(f"v_add_f32 v{T}, {hex(f32bits(1e-5))}, v{T}")
    A(f"v_cvt_pk_bf16_f32 v{T}, v{T}, v{T}\nv_lshlrev_b32 v{T}, 16, v{T}")
    A(f"v_sqrt_f32 v{T}, v{T}")
    A("s_nop 0")
    A(f"v_cvt_pk_bf16_f32 v{T}, v{T}, v{T}\nv_lshlrev_b32 v{T}, 16, v{T}")
    A(f"v_rcp_f32 v{MF}, v{T}")
    A(f"s_cmp_lt_u32 s{sNB}, 6")
    A(f"s_cbranch_scc0 {name}_epi_h")
    VA = 24
    A(f"s_and_b32 s50, s{sNB}, 1\ns_lshl_b32 s50, s50, 4\ns_lshl_b32 s51, s{sPH}, 2\ns_add_u32 s65, s50, s51")
    A(f"s_cmp_lt_u32 s{sNB}, 4")
    A(f"s_cbranch_scc0 {name}_epi_v")
    A(f"s_cmp_lt_u32 s{sNB}, 2")
    A(f"s_cbranch_scc0 {name}_epi_k")
    A(f"s_mov_b32 s{sHS}, {Q_HEAD}")
    A(f"s_lshr_b32 s51, s{sROW0}, 5\ns_mul_i32 s51, s51, {QK_TILE}\ns_add_u32 s50, s51, {WS_Q}")
    A(f"v_mul_f32 v{MF}, {hex(f32bits((20 ** -0.5) * 1.4426950408889634))}, v{MF}")
    A(f"s_branch {name}_epi_qk")
    A.label(f"{name}_epi_k")
    A(f"s_mov_b32 s{sHS}, {KV_HEAD}")
    A(f"s_lshr_b32 s51, s{sROW0}, 8\ns_mul_i32 s51, s51, {KV_CHUNK}\ns_add_u32 s50, s51, {WS_KV}")
    A(f"s_lshr_b32 s51, s{sROW0}, 5\ns_and_b32 s51, s51, 7\ns_mul_i32 s51, s51, {QK_TILE}\ns_add_u32 s50, s50, s51")
    A.label(f"{name}_epi_qk")
    A(f"s_mul_i32 s51, s65, s{sHS}\ns_add_u32 s50, s50, s51")
    A("v_lshlrev_b32 v2, 4, v6\nv_add_u32 v2, s50, v2")
    A("v_lshlrev_b32 v3, 3, v6\nv_add_u32 v3, s50, v3\nv_add_u32 v3, 1024, v3")
    A(f"v_add_u32 v8, s{sHS}, v2")
    offs = [("v2", 0), ("v2", 8), ("v2", 512), ("v2", 520), ("v3", 0), ("v8", 0)]
    for dq in range(5):
        (b0, c0), (b1, c1_) = offs[dq], offs[dq + 1]
        A(f"v_add_u32 v4, {c0}, {b0}\nv_add_u32 v5, {c1_}, {b1}")
        A(f"v_cndmask_b32 v{VA+dq}, v4, v5, s[{sHFM}:{sHFM+1}]")
    A(f"s_branch {name}_epi_qkv")
    A.label(f"{name}_epi_v")
    A(f"s_mov_b32 s{sHS}, {KV_HEAD}")
    A(f"s_lshr_b32 s51, s{sROW0}, 8\ns_mul_i32 s51, s51, {KV_CHUNK}\ns_add_u32 s50, s51, {WS_KV + KV_VOFF}")
    A(f"s_lshr_b32 s51, s{sROW0}, 5\ns_and_b32 s51, s51, 7\ns_mul_i32 s51, s51, {V_TILE}\ns_add_u32 s50, s50, s51")
    A(f"s_mul_i32 s51, s65, s{sHS}\ns_add_u32 s50, s50, s51")
    A("v_lshlrev_b32 v2, 3, v6\nv_add_u32 v2, s50, v2")
    for dq in range(5):
        c0, c1_ = dq * V_PLANE, ((dq + 1) * V_PLANE if dq < 4 else KV_HEAD)
        A(f"v_add_u32 v4, {c0}, v2\nv_add_u32 v5, {c1_}, v2")
        A(f"v_cndmask_b32 v{VA+dq}, v4, v5, s[{sHFM}:{sHFM+1}]")
    A(f"s_mov_b32 s51, {8*KV_HEAD}\nv_mul_lo_u32 v3, v7, s51\nv_add_u32 v3, v3, v2")
    A("v_mov_b32 v4, 0x3f80\nv_mov_b32 v5, 0\nv_mov_b32 v8, 0\nv_mov_b32 v9, 0")
    A(f"v_lshrrev_b32 v10, 2, v6\nv_mul_u32_u24 v10, {V_PLANE}, v10\nv_and_b32 v11, 3, v6\nv_lshl_add_u32 v10, v11, 3, v10\nv_add_u32 v10, 256, v10")
    A(f"v_lshlrev_b32 v11, 3, v6\nv_add_u32 v11, {1728-192}, v11\nv_cmp_lt_u32 vcc, 23, v6\ns_nop 1\nv_cndmask_b32 v10, v10, v11, vcc")
    A("v_lshlrev_b32 v11, 3, v6\nv_sub_u32 v11, v3, v11\nv_add_u32 v10, v10, v11")
    A(f"s_mov_b32 s{sHO}, 0")
    for i in range(4):
        A(f"buffer_store_dwordx2 v[4:5], v3, s[{sWS}:{sWS+3}], s{sHO} offen offset:{5*V_PLANE}{NT}")
        A(f"buffer_store_dwordx2 v[8:9], v10, s[{sWS}:{sWS+3}], s{sHO} offen{NT}")
        if i < 3: A(f"s_add_u32 s{sHO}, s{sHO}, s{sHS}")
    A.label(f"{name}_epi_qkv")
    A(f"v_mov_b32 v{MF+1}, v{MF}")
    A(f"s_lshl_b32 s61, s{sHS}, 3")
    q = 0
    for p in range(2):
        cur = 0
        A(f"s_mov_b32 s{sHO}, 0" if p == 0 else f"s_mov_b32 s{sHO}, s61")
        for tp in range(5):
            for a2 in range(2):
                g0 = 4 * tp + 2 * a2
                hh, dq0 = g0 // 5, g0 % 5
                while cur < hh:
                    A(f"s_add_u32 s{sHO}, s{sHO}, s{sHS}"); cur += 1
                E = 32 + 8 * (q % 4); q += 1
                base = tp * 16 + 8 * p + 4 * a2
                for i in range(4): A(f"v_accvgpr_read_b32 v{E+i}, a{base+i}")
                A(f"v_pk_mul_f32 {v(E,2)}, {v(E,2)}, {v(MF,2)}\nv_pk_mul_f32 {v(E+2,2)}, {v(E+2,2)}, {v(MF,2)}")
                A(f"v_cvt_pk_bf16_f32 v{E+4}, v{E}, v{E+1}\nv_cvt_pk_bf16_f32 v{E+5}, v{E+2}, v{E+3}")
                A(f"buffer_store_dwordx2 {v(E+4,2)}, v{VA+dq0}, s[{sWS}:{sWS+3}], s{sHO} offen{NT}")
    A(f"s_branch {name}_end")
    A.label(f"{name}_epi_h")
    A(f"v_mul_f32 v{MF}, v{MF}, v{MF}")
    A(f"v_mov_b32 v{MF+1}, v{MF}")
    A(f"s_lshr_b32 s50, s{sROW0}, 5\ns_mul_i32 s50, s50, 98304\ns_add_u32 s50, s50, {WS_H}")
    A(f"s_sub_u32 s51, s{sNB}, 6\ns_mul_i32 s51, s51, 10240\ns_add_u32 s50, s50, s51")
    A(f"s_mul_i32 s51, s{sPH}, 5120\ns_add_u32 s50, s50, s51")
    A("v_lshlrev_b32 v2, 4, v6\nv_lshl_add_u32 v2, v7, 3, v2")
    A(f"s_cmp_eq_u32 s{sNB}, 15\ns_cselect_b32 s61, s{sPH}, 0")
    q = 0
    for tp in range(5):
        if tp == 1:
            A(f"s_cmp_eq_u32 s61, 1\ns_cbranch_scc1 {name}_end")
        for a2 in range(2):
            E = 32 + 12 * (q % 2); q += 1
            bg, bu = tp * 16 + 4 * a2, tp * 16 + 8 + 4 * a2
            for i in range(4): A(f"v_accvgpr_read_b32 v{E+i}, a{bg+i}")
            for i in range(4): A(f"v_accvgpr_read_b32 v{E+4+i}, a{bu+i}")
            A(f"v_pk_mul_f32 {v(E,2)}, {v(E,2)}, {v(MF,2)}\nv_pk_mul_f32 {v(E+2,2)}, {v(E+2,2)}, {v(MF,2)}")
            for i in range(4): A(f"v_max_f32 v{E+i}, 0, v{E+i}")
            A(f"v_pk_mul_f32 {v(E,2)}, {v(E,2)}, {v(E+4,2)}\nv_pk_mul_f32 {v(E+2,2)}, {v(E+2,2)}, {v(E+6,2)}")
            A(f"v_cvt_pk_bf16_f32 v{E+8}, v{E}, v{E+1}\nv_cvt_pk_bf16_f32 v{E+9}, v{E+2}, v{E+3}")
            A(f"buffer_store_dwordx2 {v(E+8,2)}, v2, s[{sWS}:{sWS+3}], s50 offen offset:{(tp%4)*1024 + a2*512}")
        if tp == 3: A("s_add_u32 s50, s50, 4096")
    A.label(f"{name}_end")
    if stamps:
        A("s_cmp_ge_u32 s2, 256")
        A(f"s_cbranch_scc1 {name}_end2")
        A("s_waitcnt vmcnt(0)")
        stamp(5)
        A(f"s_lshl_b32 s50, s2, 3\ns_add_u32 s50, s50, s{sWAVE}\ns_lshl_b32 s50, s50, 6\ns_add_u32 s50, s50, {WS_END}")
        A("v_mov_b32 v2, 0")
        for i in range(6):
            A(f"v_mov_b32 v3, s{72+i}")
            A(f"buffer_store_dword v3, v2, s[{sWS}:{sWS+3}], s50 offen offset:{4*i}")
        for i in range(fcount[0]):
            A(f"v_mov_b32 v3, s{90+i}")
            A(f"buffer_store_dword v3, v2, s[{sWS}:{sWS+3}], s50 offen offset:{24+4*i}")
        A.label(f"{name}_end2")
    rt_end(A, rt, 0, sWS, name)
    A("s_waitcnt vmcnt(0)")
    A("s_endpgm")
    return A.text(), kernel_desc(name, 256, 176)
```

```python
from common import *
import struct
def f32bits(x): return struct.unpack("<I", struct.pack("<f", x))[0]
NSLOT = 5
P1OFF = 10272
XOFF = 21536
SLOT = XOFF + 8192
K1_LDS = NSLOT * SLOT

def gen_k1(name="k1_kernel", rt=False, stamps=False, map_mode=0, perm=1, rotate=1, dma_gaps=(8, 9, 0, 1), wait_every=2, exp=0, Dahead=6):
    A = Asm()
    stamp = mk_stamp(A, stamps)
    A.raw(kernel_header(name))
    WF, XC = 24, 64
    RD, LP, XRD, XLP, VL16 = 72, 73, 74, 75, 76
    DMA = 77
    MF = 80
    LANE = 1
    sW, sWS = 28, 32
    sWAVE, sMB, sNB, sLDW, sDOFF, sSTEP, sWR, sRD, sC, sWRC = 40, 41, 42, 43, 44, 45, 47, 48, 49, 46
    sM0 = 52
    sTG, sPH, sXO, sTAU, sCOL, sXB = 56, 57, 58, 59, 65, 68
    sROW0, sHS, sHO, sHFM = 62, 63, 64, 66
    A("s_cmp_ge_u32 s2, 256")
    A(f"s_cbranch_scc1 {name}_end")
    rt_begin(A, rt)
    stamp(0)
    A("s_load_dwordx16 s[4:19], s[0:1], 0")
    A("s_load_dwordx4 s[20:23], s[0:1], 64")
    A(f"v_and_b32 v{LANE}, 63, v0")
    A("v_lshrrev_b32 v2, 6, v0")
    A("s_and_b32 s50, s2, 7\ns_lshr_b32 s51, s2, 3")
    A(f"v_readfirstlane_b32 s{sWAVE}, v2")
    if map_mode == 0:
        A(f"s_and_b32 s{sMB}, s50, 1\ns_lshl_b32 s{sMB}, s{sMB}, 3\ns_and_b32 s60, s51, 7\ns_add_u32 s{sMB}, s{sMB}, s60")
        A(f"s_lshr_b32 s{sNB}, s50, 1\ns_lshl_b32 s{sNB}, s{sNB}, 2\ns_lshr_b32 s60, s51, 3\ns_add_u32 s{sNB}, s{sNB}, s60")
    else:
        A(f"s_and_b32 s{sMB}, s50, 3\ns_lshl_b32 s{sMB}, s{sMB}, 2\ns_and_b32 s60, s51, 3\ns_add_u32 s{sMB}, s{sMB}, s60")
        A(f"s_lshr_b32 s{sNB}, s50, 2\ns_lshl_b32 s{sNB}, s{sNB}, 3\ns_lshr_b32 s60, s51, 2\ns_add_u32 s{sNB}, s{sNB}, s60")
    if perm:
        order = [0, 1, 6, 7, 2, 3, 8, 9, 4, 10, 11, 12, 5, 13, 14, 15] if map_mode == 0 else [0, 1, 2, 6, 7, 8, 9, 10, 3, 4, 5, 11, 12, 13, 14, 15]
        tab = sum(o << (4 * i) for i, o in enumerate(order))
        A(f"s_mov_b32 s60, {hex(tab & 0xffffffff)}\ns_mov_b32 s61, {hex(tab >> 32)}\ns_lshl_b32 s{sNB}, s{sNB}, 2\ns_lshr_b64 s[60:61], s[60:61], s{sNB}\ns_and_b32 s{sNB}, s60, 15")
    A(f"s_and_b32 s{sTG}, s{sWAVE}, 3\ns_lshr_b32 s{sPH}, s{sWAVE}, 2")
    A(f"s_lshl_b32 s{sROW0}, s{sMB}, 7\ns_lshl_b32 s60, s{sTG}, 5\ns_add_u32 s{sROW0}, s{sROW0}, s60")
    if rotate:
        A(f"s_add_u32 s60, s{sMB}, s{sNB}\ns_mul_i32 s60, s60, 3\ns_mul_i32 s61, s60, 205\ns_lshr_b32 s61, s61, 12\ns_mul_i32 s61, s61, 20\ns_sub_u32 s{sTAU}, s60, s61")
    else:
        A(f"s_mov_b32 s{sTAU}, 0")
    A(f"v_lshlrev_b32 v{VL16}, 4, v{LANE}")
    A(f"s_cmp_lt_u32 s{sNB}, 6")
    A(f"s_cselect_b32 s{sLDW}, 3840, 0\ns_cselect_b32 s60, 0, 3072\ns_add_u32 s{sLDW}, s{sLDW}, s60")
    A(f"s_mul_i32 s{sCOL}, s{sNB}, 640\ns_mul_i32 s51, s{sPH}, 320\ns_add_u32 s{sCOL}, s{sCOL}, s51")
    A(f"s_sub_u32 s60, s{sNB}, 6\ns_mul_i32 s60, s60, 320")
    A(f"s_cmp_lt_u32 s{sNB}, 6\ns_cselect_b32 s{sCOL}, s{sCOL}, s60")
    A(f"s_lshl_b32 s{sSTEP}, s{sLDW}, 5")
    A(f"s_mul_i32 s51, s{sTG}, 192")
    A("s_movk_i32 s60, 3277")
    A(f"s_mul_i32 s50, s{sPH}, {P1OFF}")
    A(f"s_mul_i32 s61, s{sTG}, 3072\ns_add_u32 s50, s50, s61")
    for j in range(3):
        A(f"v_add_u32 v5, s51, v{LANE}")
        if j: A(f"v_add_u32 v5, {j*64}, v5")
        A("v_mul_lo_u32 v6, v5, s60")
        A("v_lshrrev_b32 v6, 16, v6")
        A("v_mul_u32_u24 v7, 20, v6")
        A("v_sub_u32 v7, v5, v7")
        A(f"v_mul_lo_u32 v6, v6, s{sLDW}")
        A(f"v_lshl_add_u32 v{DMA+j}, v7, 4, v6")
        A(f"s_add_u32 s{sM0+j}, s50, {j*1024}")
        if j > 0:
            A(f"s_cmp_eq_u32 s{sTG}, 3")
            A(f"s_cselect_b32 s{sM0+j}, 20512, s{sM0+j}")
            A(f"s_cselect_b32 s61, 0x7ff00000, 0")
            A(f"v_or_b32 v{DMA+j}, s61, v{DMA+j}")
    A(f"s_lshl_b32 s60, s{sTG}, 11\ns_lshl_b32 s61, s{sPH}, 10\ns_add_u32 s60, s60, s61\ns_add_u32 s{sM0+3}, s60, {XOFF}")
    A(f"s_lshr_b32 s{sXB}, s{sROW0}, 5\ns_mul_i32 s{sXB}, s{sXB}, 40960\ns_add_u32 s{sXB}, s{sXB}, s61\ns_add_u32 s{sXB}, s{sXB}, {WS_XN}")
    A("s_waitcnt lgkmcnt(0)")
    srd(A, sWS, 22, 23, WS_SIZE)
    A(f"s_cmp_lt_u32 s{sNB}, 6")
    A(f"s_cbranch_scc0 {name}_gu_src")
    A(f"s_mov_b32 s{sW}, s6\ns_and_b32 s{sW+1}, s7, 0xffff\ns_mov_b32 s{sW+2}, {D*1920*2}")
    A(f"s_branch {name}_src_done")
    A.label(f"{name}_gu_src")
    A(f"s_cmp_eq_u32 s{sPH}, 0")
    A(f"s_cselect_b32 s{sW}, s12, s14\ns_cselect_b32 s{sW+1}, s13, s15")
    A(f"s_and_b32 s{sW+1}, s{sW+1}, 0xffff\ns_mov_b32 s{sW+2}, {D*F*2}")
    A.label(f"{name}_src_done")
    A(f"s_mov_b32 s{sW+3}, 0x00020000")
    def src_ops():
        return [f"s_mul_i32 s50, s{sTAU}, s{sSTEP}", f"s_add_u32 s50, s50, s{sCOL}", f"s_lshl_b32 s51, s{sTAU}, 11", f"s_add_u32 s51, s51, s{sXB}",
                f"s_add_u32 s{sTAU}, s{sTAU}, 1", f"s_cmp_ge_u32 s{sTAU}, 20", f"s_cselect_b32 s{sTAU}, 0, s{sTAU}"]
    def dma_i(j, slot_expr):
        m0 = f"s_add_u32 m0, s{sM0+j}, {slot_expr}"
        ld = f"buffer_load_dwordx4 v{DMA+j}, s[{sW}:{sW+3}], s50 offen lds" if j < 3 else f"buffer_load_dwordx4 v{VL16}, s[{sWS}:{sWS+3}], s51 offen lds"
        return m0, ld
    NPRE = NSLOT - 1
    def pre_chunk(c):
        for o in src_ops(): A(o)
        for j in (3, 0, 1, 2):
            m0, ld = dma_i(j, c * SLOT); A(m0); A("s_nop 0"); A(ld)
    pre_chunk(0)
    stamp(1)
    A(f"v_and_b32 v6, 31, v{LANE}\nv_lshrrev_b32 v7, 5, v{LANE}")
    A(f"v_cmp_lt_u32 s[{sHFM}:{sHFM+1}], 31, v{LANE}")
    A(f"v_and_b32 v21, 15, v{LANE}\nv_lshrrev_b32 v22, 2, v21\nv_lshl_add_u32 v22, v7, 3, v22")
    A(f"v_mul_u32_u24 v{LP}, 320, v22\nv_and_b32 v22, 3, v21\nv_lshl_add_u32 v{LP}, v22, 3, v{LP}")
    A(f"v_bfe_u32 v22, v{LANE}, 4, 1\nv_mul_u32_u24 v22, {P1OFF}, v22\nv_add_u32 v{LP}, v22, v{LP}")
    A(f"s_mul_i32 s60, s{sPH}, 160\nv_add_u32 v{LP}, s60, v{LP}\nv_mov_b32 v{RD}, v{LP}")
    A(f"s_lshl_b32 s60, s{sTG}, 11\ns_add_u32 s60, s60, {XOFF}\nv_add_u32 v{XLP}, s60, v{VL16}\nv_mov_b32 v{XRD}, v{XLP}")
    pre_chunk(1)
    for i in range(80): A(f"v_accvgpr_write_b32 a{i}, 0")
    A(f"s_mov_b32 s{sC}, 0\ns_mov_b32 s{sRD}, 0\ns_mov_b32 s{sWR}, {NPRE*SLOT}\ns_mov_b32 s{sWRC}, {NPRE*SLOT}")
    A("s_waitcnt vmcnt(4)")
    A("s_barrier")
    stamp(2)
    def rd_ops(m):
        ks, tp = divmod(m % 10, 5)
        buf = WF + 4 * (m % 10)
        return [f"ds_read_b64_tr_b16 {v(buf+2*j,2)}, v{RD} offset:{(16*ks+4*j)*320 + tp*32}" for j in range(2)]
    for m in range(Dahead):
        for o in rd_ops(m): A(o)
    A(f"ds_read_b128 {v(XC,4)}, v{XRD}\nds_read_b128 {v(XC+4,4)}, v{XRD} offset:1024")
    for c in range(2, NPRE): pre_chunk(c)
    A("s_mov_b32 s50, 0x40000000\ns_mov_b32 s51, 0x40000000")
    A("s_waitcnt lgkmcnt(0)")
    bar_gap = 10 - Dahead - 1
    fill = {g: [] for g in range(10)}
    fill[bar_gap] += [f"s_waitcnt vmcnt({4*(NPRE-2)})", "s_barrier",
                      f"s_mov_b32 s{sWR}, s{sWRC}", f"s_mov_b32 s{sWRC}, s{sRD}",
                      f"s_add_u32 s{sRD}, s{sRD}, {SLOT}", f"s_cmp_ge_u32 s{sRD}, {NSLOT*SLOT}", f"s_cselect_b32 s{sRD}, 0, s{sRD}",
                      f"v_add_u32 v{RD}, s{sRD}, v{LP}", f"v_add_u32 v{XRD}, s{sRD}, v{XLP}"]
    so = src_ops()
    fill[bar_gap + 1] += so[:4]
    fill[bar_gap + 2] += so[4:] + [f"s_cmp_lt_u32 s{sC}, {20-NPRE}", "s_cselect_b32 s50, s50, 0x40000000", "s_cselect_b32 s51, s51, 0x40000000"]
    assert all(g > bar_gap + 2 or g < bar_gap for g in dma_gaps)
    for j in range(4):
        if exp & 1: continue
        m0, ld = dma_i(j, f"s{sWR}")
        fill[dma_gaps[j]] = [("m0", m0), ("dma", ld)] + fill[dma_gaps[j]]
    fill[9] += [f"s_add_u32 s{sC}, s{sC}, 1", f"s_cmp_lt_u32 s{sC}, 20", f"s_cbranch_scc1 {name}_loop"]
    xrd = {4: f"ds_read_b128 {v(XC,4)}, v{XRD}", 9: f"ds_read_b128 {v(XC+4,4)}, v{XRD} offset:1024"}
    assert bar_gap < 4
    stream = []
    for m in range(10):
        ks, tp = divmod(m, 5)
        stream.append(("mfma", m, f"v_mfma_f32_32x32x16_bf16 {a(16*tp,16)}, {v(WF+4*m,4)}, {v(XC+4*ks,4)}, {a(16*tp,16)}"))
        m0s = [o for o in fill[m] if isinstance(o, tuple) and o[0] == "m0"]
        if m0s: stream.append(("other", None, m0s[0][1]))
        for o in rd_ops(m + Dahead): stream.append(("lds", ("w", (m + Dahead) % 10), o))
        if m in xrd: stream.append(("lds", ("x", 0 if m == 4 else 1), xrd[m]))
        seen = 0
        for o in fill[m]:
            if isinstance(o, tuple):
                if o[0] == "m0":
                    seen += 1
                    if seen == 1: continue
                    stream.append(("other", None, o[1])); stream.append(("other", None, "s_nop 0"))
                else: stream.append(("other", None, o[1]))
            elif exp & 2 and o == "s_barrier": continue
            else: stream.append(("other", None, o))
    A(".p2align 6")
    A.label(f"{name}_loop")
    L = len(stream); full = stream + stream
    def need_n(pos, tag):
        p = max(q for q in range(pos) if full[q][0] == "lds" and full[q][1] == tag)
        return sum(1 for q in range(p + 1, pos) if full[q][0] == "lds")
    for q, (kind, tag, txt) in enumerate(stream):
        if kind == "mfma" and tag % wait_every == 0:
            ns = []
            for mm in range(tag, min(tag + wait_every, 10)): ns += [need_n(L + q, ("w", mm)), need_n(L + q, ("x", mm // 5))]
            A(f"s_waitcnt lgkmcnt({min(min(ns), 15)})")
        A(txt)
    A("s_waitcnt lgkmcnt(0)")
    stamp(3)
    A(f"s_cmp_lt_u32 s{sNB}, 6")
    A(f"s_cbranch_scc0 {name}_epi_h")
    VA = 24
    A(f"s_and_b32 s50, s{sNB}, 1\ns_lshl_b32 s50, s50, 4\ns_lshl_b32 s51, s{sPH}, 2\ns_add_u32 s65, s50, s51")
    A(f"v_mov_b32 v{MF}, 1.0")
    A(f"s_cmp_lt_u32 s{sNB}, 4")
    A(f"s_cbranch_scc0 {name}_epi_v")
    A(f"s_cmp_lt_u32 s{sNB}, 2")
    A(f"s_cbranch_scc0 {name}_epi_k")
    A(f"s_mov_b32 s{sHS}, {Q_HEAD}")
    A(f"s_lshr_b32 s51, s{sROW0}, 5\ns_mul_i32 s51, s51, {QK_TILE}\ns_add_u32 s50, s51, {WS_Q}")
    A(f"v_mov_b32 v{MF}, {hex(f32bits((20 ** -0.5) * 1.4426950408889634))}")
    A(f"s_branch {name}_epi_qk")
    A.label(f"{name}_epi_k")
    A(f"s_mov_b32 s{sHS}, {KV_HEAD}")
    A(f"s_lshr_b32 s51, s{sROW0}, 8\ns_mul_i32 s51, s51, {KV_CHUNK}\ns_add_u32 s50, s51, {WS_KV}")
    A(f"s_lshr_b32 s51, s{sROW0}, 5\ns_and_b32 s51, s51, 7\ns_mul_i32 s51, s51, {QK_TILE}\ns_add_u32 s50, s50, s51")
    A.label(f"{name}_epi_qk")
    A(f"s_mul_i32 s51, s65, s{sHS}\ns_add_u32 s50, s50, s51")
    A("v_lshlrev_b32 v2, 4, v6\nv_add_u32 v2, s50, v2")
    A("v_lshlrev_b32 v3, 3, v6\nv_add_u32 v3, s50, v3\nv_add_u32 v3, 1024, v3")
    A(f"v_add_u32 v8, s{sHS}, v2")
    offs = [("v2", 0), ("v2", 8), ("v2", 512), ("v2", 520), ("v3", 0), ("v8", 0)]
    for dq in range(5):
        (b0, c0), (b1, c1_) = offs[dq], offs[dq + 1]
        A(f"v_add_u32 v4, {c0}, {b0}\nv_add_u32 v5, {c1_}, {b1}")
        A(f"v_cndmask_b32 v{VA+dq}, v4, v5, s[{sHFM}:{sHFM+1}]")
    A(f"s_branch {name}_epi_qkv")
    A.label(f"{name}_epi_v")
    A(f"s_mov_b32 s{sHS}, {KV_HEAD}")
    A(f"s_lshr_b32 s51, s{sROW0}, 8\ns_mul_i32 s51, s51, {KV_CHUNK}\ns_add_u32 s50, s51, {WS_KV + KV_VOFF}")
    A(f"s_lshr_b32 s51, s{sROW0}, 5\ns_and_b32 s51, s51, 7\ns_mul_i32 s51, s51, {V_TILE}\ns_add_u32 s50, s50, s51")
    A(f"s_mul_i32 s51, s65, s{sHS}\ns_add_u32 s50, s50, s51")
    A("v_lshlrev_b32 v2, 3, v6\nv_add_u32 v2, s50, v2")
    for dq in range(5):
        c0, c1_ = dq * V_PLANE, ((dq + 1) * V_PLANE if dq < 4 else KV_HEAD)
        A(f"v_add_u32 v4, {c0}, v2\nv_add_u32 v5, {c1_}, v2")
        A(f"v_cndmask_b32 v{VA+dq}, v4, v5, s[{sHFM}:{sHFM+1}]")
    A(f"s_mov_b32 s51, {8*KV_HEAD}\nv_mul_lo_u32 v3, v7, s51\nv_add_u32 v3, v3, v2")
    A("v_mov_b32 v4, 0x3f80\nv_mov_b32 v5, 0\nv_mov_b32 v8, 0\nv_mov_b32 v9, 0")
    A(f"v_lshrrev_b32 v10, 2, v6\nv_mul_u32_u24 v10, {V_PLANE}, v10\nv_and_b32 v11, 3, v6\nv_lshl_add_u32 v10, v11, 3, v10\nv_add_u32 v10, 256, v10")
    A(f"v_lshlrev_b32 v11, 3, v6\nv_add_u32 v11, {1728-192}, v11\nv_cmp_lt_u32 vcc, 23, v6\ns_nop 1\nv_cndmask_b32 v10, v10, v11, vcc")
    A("v_lshlrev_b32 v11, 3, v6\nv_sub_u32 v11, v3, v11\nv_add_u32 v10, v10, v11")
    A(f"s_mov_b32 s{sHO}, 0")
    for i in range(4):
        A(f"buffer_store_dwordx2 v[8:9], v10, s[{sWS}:{sWS+3}], s{sHO} offen")
        A(f"buffer_store_dwordx2 v[4:5], v3, s[{sWS}:{sWS+3}], s{sHO} offen offset:{5*V_PLANE}")
        if i < 3: A(f"s_add_u32 s{sHO}, s{sHO}, s{sHS}")
    A.label(f"{name}_epi_qkv")
    A(f"v_mov_b32 v{MF+1}, v{MF}")
    A(f"s_lshl_b32 s61, s{sHS}, 3")
    q = 0
    for p in range(2):
        cur = 0
        A(f"s_mov_b32 s{sHO}, 0" if p == 0 else f"s_mov_b32 s{sHO}, s61")
        for tp in range(5):
            for a2 in range(2):
                g0 = 4 * tp + 2 * a2
                hh, dq0 = g0 // 5, g0 % 5
                while cur < hh:
                    A(f"s_add_u32 s{sHO}, s{sHO}, s{sHS}"); cur += 1
                E = 32 + 8 * (q % 4); q += 1
                base = tp * 16 + 8 * p + 4 * a2
                for i in range(4): A(f"v_accvgpr_read_b32 v{E+i}, a{base+i}")
                A(f"v_pk_mul_f32 {v(E,2)}, {v(E,2)}, {v(MF,2)}\nv_pk_mul_f32 {v(E+2,2)}, {v(E+2,2)}, {v(MF,2)}")
                A(f"v_cvt_pk_bf16_f32 v{E+4}, v{E}, v{E+1}\nv_cvt_pk_bf16_f32 v{E+5}, v{E+2}, v{E+3}")
                A(f"buffer_store_dwordx2 {v(E+4,2)}, v{VA+dq0}, s[{sWS}:{sWS+3}], s{sHO} offen")
    A(f"s_branch {name}_end")
    A.label(f"{name}_epi_h")
    A(f"s_lshr_b32 s50, s{sROW0}, 5\ns_mul_i32 s50, s50, 98304\ns_add_u32 s50, s50, {WS_H}")
    A(f"s_sub_u32 s51, s{sNB}, 6\ns_mul_i32 s51, s51, 10240\ns_add_u32 s50, s50, s51")
    A(f"s_mul_i32 s51, s{sPH}, 5120\ns_add_u32 s50, s50, s51")
    A("v_lshlrev_b32 v2, 4, v6\nv_lshl_add_u32 v2, v7, 3, v2")
    A(f"s_cmp_eq_u32 s{sNB}, 15\ns_cselect_b32 s61, s{sPH}, 0")
    q = 0
    for tp in range(5):
        if tp == 1:
            A(f"s_cmp_eq_u32 s61, 1\ns_cbranch_scc1 {name}_end")
        for a2 in range(2):
            E = 32 + 12 * (q % 2); q += 1
            bg, bu = tp * 16 + 4 * a2, tp * 16 + 8 + 4 * a2
            for i in range(4): A(f"v_accvgpr_read_b32 v{E+i}, a{bg+i}")
            for i in range(4): A(f"v_accvgpr_read_b32 v{E+4+i}, a{bu+i}")
            for i in range(4): A(f"v_max_f32 v{E+i}, 0, v{E+i}")
            A(f"v_pk_mul_f32 {v(E,2)}, {v(E,2)}, {v(E+4,2)}\nv_pk_mul_f32 {v(E+2,2)}, {v(E+2,2)}, {v(E+6,2)}")
            A(f"v_cvt_pk_bf16_f32 v{E+8}, v{E}, v{E+1}\nv_cvt_pk_bf16_f32 v{E+9}, v{E+2}, v{E+3}")
            A(f"buffer_store_dwordx2 {v(E+8,2)}, v2, s[{sWS}:{sWS+3}], s50 offen offset:{(tp%4)*1024 + a2*512}")
        if tp == 3: A("s_add_u32 s50, s50, 4096")
    A.label(f"{name}_end")
    rt_end(A, rt, 0, sWS, name)
    stamp_dump(A, stamps, 4, sWS, 8, name)
    A("s_waitcnt vmcnt(0)")
    A("s_endpgm")
    return A.text(), kernel_desc(name, 88 + 80, 88)
```

```python
from common import *
import struct
def f32bits(x): return struct.unpack("<I", struct.pack("<f", x))[0]

KVSLOT = KV_CHUNK
GW_BASE = 3 * KVSLOT
GW_STAGE = 5120
GW_WAVE = 4 * GW_STAGE
K2_LDS = GW_BASE + 4 * GW_WAVE
RED_BASE = GW_BASE

def gemm_lane_setup(A, LANE, sLDWrow, VD, VRD):
    A("s_movk_i32 s60, 3277")
    A("s_movk_i32 s61, 1280")
    for i in range(5):
        A(f"v_add_u32 v5, {i*64}, v{LANE}")
        A("v_mul_lo_u32 v6, v5, s60")
        A("v_lshrrev_b32 v6, 16, v6")
        A("v_mul_u32_u24 v7, 20, v6")
        A("v_sub_u32 v7, v5, v7")
        A("v_mul_lo_u32 v6, v6, s61")
        A(f"v_lshl_add_u32 v{VD+i}, v7, 4, v6")
    A(f"v_and_b32 v5, 15, v{LANE}")
    A(f"v_lshrrev_b32 v6, 5, v{LANE}")
    A("v_lshrrev_b32 v7, 2, v5")
    A("v_lshl_add_u32 v7, v6, 3, v7")
    A(f"v_mul_u32_u24 v{VRD}, 320, v7")
    A("v_and_b32 v7, 3, v5")
    A(f"v_lshl_add_u32 v{VRD}, v7, 3, v{VRD}")
    A(f"v_bfe_u32 v7, v{LANE}, 4, 1")
    A(f"v_lshl_add_u32 v{VRD}, v7, 5, v{VRD}")

def gen_k2(name="k2_kernel", rt=False, stamps=False, force_fallback=False, no_gemm=False, abl=0, prio=0):
    A = Asm()
    A.raw(kernel_header(name))
    LANE = 1
    sWS, sX, sWD = 24, 28, 32
    sWAVE, sHEAD, sQB, sT, sNQ = 40, 41, 42, 43, 44
    def stamp(i):
        if not stamps: return
        A(f"s_memtime s[70:71]")
        A("s_waitcnt lgkmcnt(0)")
        A(f"s_mov_b32 s{72+i}, s70")
    def stamp_out(n, lab):
        if not stamps: return
        A("s_waitcnt vmcnt(0)")
        stamp(n)
        A(f"s_mul_i32 s50, s2, 12\ns_add_u32 s50, s50, s{sWAVE}\ns_lshl_b32 s50, s50, 6\ns_add_u32 s50, s50, {WS_END}")
        A("v_mov_b32 v2, 0")
        for i in range(n + 1):
            A(f"v_mov_b32 v3, s{72+i}")
            A(f"buffer_store_dword v3, v2, s[{sWS}:{sWS+3}], s50 offen offset:{4*i}")
    A("s_cmp_ge_u32 s2, 256")
    A(f"s_cbranch_scc1 {name}_end")
    rt_begin(A, rt)
    stamp(0)
    A("s_load_dwordx2 s[4:5], s[0:1], 0")
    A("s_load_dwordx2 s[6:7], s[0:1], 48")
    A("s_load_dwordx2 s[8:9], s[0:1], 72")
    A(f"v_and_b32 v{LANE}, 63, v0")
    A("v_lshrrev_b32 v2, 6, v0")
    A("s_and_b32 s50, s2, 7\ns_lshr_b32 s51, s2, 3")
    A(f"v_readfirstlane_b32 s{sWAVE}, v2")
    A(f"s_and_b32 s{sHEAD}, s51, 3\ns_lshl_b32 s52, s50, 2\ns_add_u32 s{sHEAD}, s{sHEAD}, s52")
    A(f"s_lshr_b32 s{sQB}, s51, 2")
    A(f"s_and_b32 s{sT}, s51, 7\ns_lshl_b32 s52, s50, 3\ns_add_u32 s{sT}, s{sT}, s52")
    A(f"s_lshr_b32 s{sNQ}, s51, 3")
    A("s_waitcnt lgkmcnt(0)")
    srd(A, sWS, 8, 9, WS_SIZE)
    A(f"s_cmp_ge_u32 s{sWAVE}, 8")
    A(f"s_cbranch_scc1 {name}_gemm")
    Q1, Q2, Q1B, Q2B, K1, K2, VLO, VHI = 8, 12, 16, 20, 24, 28, 32, 36
    P, PB, O, OB, S0, S1 = 40, 48, 56, 72, 88, 104
    aK1, aK2, aVLO, aVHI = 120, 121, 122, 123
    lK1, lK2, lV = 124, 125, 126
    TQ, HF, TMP = 127, 128, 129
    sSLOT, sC, sHFM, sQT, sKH, sQG = 45, 46, 48, 47, 55, 56
    A(f"v_and_b32 v{TQ}, 31, v{LANE}")
    A(f"v_lshrrev_b32 v{HF}, 5, v{LANE}")
    A(f"v_cmp_lt_u32 s[{sHFM}:{sHFM+1}], 31, v{LANE}")
    A(f"s_and_b32 s{sQG}, s{sWAVE}, 3\ns_lshr_b32 s{sKH}, s{sWAVE}, 2")
    A(f"s_lshl_b32 s{sQT}, s{sQB}, 3\ns_lshl_b32 s50, s{sQG}, 1\ns_add_u32 s{sQT}, s{sQT}, s50")
    A(f"s_xor_b32 s52, s{sKH}, 1\ns_add_u32 s52, s52, s{sQT}\ns_add_u32 s{sQT}, s{sQT}, s{sKH}")
    A(f"v_lshlrev_b32 v{lK1}, 4, v{TQ}\nv_lshl_add_u32 v{lK1}, v{HF}, 9, v{lK1}")
    A(f"v_lshlrev_b32 v{lK2}, 3, v{TQ}\nv_add_u32 v{lK2}, 1024, v{lK2}")
    A(f"s_mul_i32 s50, s{sHEAD}, {Q_HEAD}\ns_add_u32 s50, s50, {WS_Q}")
    A(f"s_mul_i32 s51, s{sQT}, {QK_TILE}\ns_add_u32 s51, s51, s50\ns_mul_i32 s52, s52, {QK_TILE}\ns_add_u32 s52, s52, s50")
    A(f"buffer_load_dwordx4 {v(Q1,4)}, v{lK1}, s[{sWS}:{sWS+3}], s51 offen")
    A(f"buffer_load_dwordx2 {v(Q2,2)}, v{lK2}, s[{sWS}:{sWS+3}], s51 offen")
    A(f"buffer_load_dwordx4 {v(Q1B,4)}, v{lK1}, s[{sWS}:{sWS+3}], s52 offen")
    A(f"buffer_load_dwordx2 {v(Q2B,2)}, v{lK2}, s[{sWS}:{sWS+3}], s52 offen")
    A(f"s_mul_i32 s53, s{sHEAD}, {KV_HEAD}\ns_add_u32 s53, s53, {WS_KV}")
    A(f"buffer_load_dwordx4 {v(K1,4)}, v{lK1}, s[{sWS}:{sWS+3}], s53 offen")
    A(f"buffer_load_dwordx2 {v(K2,2)}, v{lK2}, s[{sWS}:{sWS+3}], s53 offen")
    A(f"v_and_b32 v2, 15, v{LANE}\nv_and_b32 v3, 3, v2\nv_lshrrev_b32 v2, 2, v2")
    A(f"v_bfe_u32 v4, v{LANE}, 4, 1")
    A("v_lshl_add_u32 v3, v4, 2, v3\nv_min_u32 v3, 5, v3")
    A(f"v_mul_u32_u24 v{lV}, {V_PLANE}, v3")
    A(f"v_lshl_add_u32 v2, v{HF}, 2, v2")
    A(f"v_lshl_add_u32 v{lV}, v2, 3, v{lV}")
    A(f"v_add_u32 v{lV}, {KV_VOFF}, v{lV}")
    LK1, LK2, LV = TMP + 5, TMP + 6, TMP + 7
    A(f"s_mul_i32 s50, s{sKH}, {QK_TILE}\ns_mul_i32 s51, s{sKH}, {V_TILE}")
    A(f"v_add_u32 v{LK1}, s50, v{lK1}\nv_add_u32 v{LK2}, s50, v{lK2}\nv_add_u32 v{LV}, s51, v{lV}")
    A(f"v_mov_b32 v{aK1}, v{LK1}\nv_mov_b32 v{aK2}, v{LK2}\nv_mov_b32 v{aVLO}, v{LV}\nv_mov_b32 v{aVHI}, v{LV}")
    A(f"v_mov_b32 v{K2+2}, 0x3f80\nv_mov_b32 v{K2+3}, 0")
    for q2 in (Q2, Q2B): A(f"v_mov_b32 v{q2+2}, 0\nv_mov_b32 v{q2+3}, 0")
    for i in range(32): A(f"v_mov_b32 v{O+i}, 0")
    for i in range(4): A(f"v_mov_b32 v{VHI+i}, 0\nv_mov_b32 v{PB+4+i}, 0")
    A("s_waitcnt vmcnt(0)")
    for q2 in (Q2, Q2B):
        A(f"v_cndmask_b32 v{q2}, v{q2}, v{q2+3}, s[{sHFM}:{sHFM+1}]")
        A(f"v_cndmask_b32 v{q2+1}, v{q2+1}, v{q2+3}, s[{sHFM}:{sHFM+1}]")
    A("s_nop 1")
    M = lambda d, x, y, c: A(f"v_mfma_f32_32x32x16_bf16 {v(d,16)}, {v(x,4)}, {v(y,4)}, {c}")
    M(S0, K1, Q1, "0"); M(S1, K1, Q1B, "0"); M(S0, K2, Q2, v(S0,16)); M(S1, K2, Q2B, v(S1,16))
    A("s_nop 15\ns_nop 3")
    for (Sx, q2, tm) in ((S0, Q2, TMP), (S1, Q2B, TMP + 2)):
        A(f"v_max3_f32 v{tm}, v{Sx}, v{Sx+1}, v{Sx+2}")
        for i in range(3, 15, 2): A(f"v_max3_f32 v{tm}, v{tm}, v{Sx+i}, v{Sx+i+1}")
        A(f"v_max_f32 v{tm}, v{tm}, v{Sx+15}")
        A(f"v_mov_b32 v{tm+1}, v{tm}")
        A("s_nop 1")
        A(f"v_permlane32_swap_b32 v{tm}, v{tm+1}")
        A("s_nop 1")
        A(f"v_max_f32 v{tm}, v{tm}, v{tm+1}")
        A(f"v_sub_f32 v{tm}, 0, v{tm}")
        A(f"v_cvt_pk_bf16_f32 v{tm}, v{tm}, v{q2+3}")
        A(f"v_cndmask_b32 v{q2+2}, v{tm}, v{q2+3}, s[{sHFM}:{sHFM+1}]")
    if prio: A(f"s_setprio {prio}")
    A("s_barrier")
    stamp(1)
    def vrd(dst, areg, tile, m):
        return [f"ds_read_b64_tr_b16 {v(dst+2*j,2)}, v{areg} offset:{tile*V_TILE + (16*m+8*j)*8}" for j in range(2)]
    A(f"ds_read_b128 {v(K1,4)}, v{aK1}")
    A(f"ds_read_b64 {v(K2,2)}, v{aK2}")
    for o in vrd(VLO, aVLO, 0, 0): A(o)
    A(f"s_mov_b32 s{sSLOT}, {KVSLOT}")
    A(f"s_mov_b32 s{sC}, 0")
    A("s_waitcnt lgkmcnt(0)")
    M(S0, K1, Q1, "0"); M(S0, K2, Q2, v(S0,16))
    A("s_nop 15")
    A(".p2align 6")
    A.label(f"{name}_aloop")
    def expcvt(Sx, i0, p0, Px=None):
        Px = P if Px is None else Px
        for i in range(4): A(f"v_exp_f32 v{Sx+i0+i}, v{Sx+i0+i}")
        A(f"v_cvt_pk_bf16_f32 v{Px+p0}, v{Sx+i0}, v{Sx+i0+1}")
        A(f"v_cvt_pk_bf16_f32 v{Px+p0+1}, v{Sx+i0+2}, v{Sx+i0+3}")
    for i in range(4):
        nt_ = 2 * ((i + 1) % 4)
        if i == 3:
            if not abl & 2: A("s_barrier")
            A(f"v_add_u32 v{aK1}, s{sSLOT}, v{LK1}\nv_add_u32 v{aK2}, s{sSLOT}, v{LK2}\nv_add_u32 v{aVLO}, s{sSLOT}, v{LV}")
        M(S1, K1, Q1B, "0")
        A(f"ds_read_b128 {v(K1,4)}, v{aK1} offset:{nt_*QK_TILE}")
        expcvt(S0, 0, 0)
        M(OB, VHI, PB + 4, v(OB,16))
        for o in vrd(VHI, aVHI, 2 * i, 1): A(o)
        expcvt(S0, 4, 2)
        M(S1, K2, Q2B, v(S1,16))
        A(f"ds_read_b64 {v(K2,2)}, v{aK2} offset:{nt_*QK_TILE}")
        expcvt(S0, 8, 4)
        A("s_waitcnt lgkmcnt(4)")
        M(O, VLO, P, v(O,16))
        expcvt(S0, 12, 6)
        A("s_waitcnt lgkmcnt(3)")
        M(S0, K1, Q1, "0")
        expcvt(S1, 0, 0, PB)
        A("s_waitcnt lgkmcnt(1)")
        M(O, VHI, P + 4, v(O,16))
        expcvt(S1, 4, 2, PB)
        A("s_waitcnt lgkmcnt(0)")
        M(S0, K2, Q2, v(S0,16))
        expcvt(S1, 8, 4, PB)
        M(OB, VLO, PB, v(OB,16))
        for o in vrd(VLO, aVLO, nt_, 0): A(o)
        expcvt(S1, 12, 6, PB)
    A(f"v_add_u32 v{aVHI}, s{sSLOT}, v{LV}")
    A(f"s_add_u32 s{sSLOT}, s{sSLOT}, {KVSLOT}\ns_cmp_ge_u32 s{sSLOT}, {3*KVSLOT}\ns_cselect_b32 s{sSLOT}, 0, s{sSLOT}")
    A(f"s_add_u32 s{sC}, s{sC}, 1\ns_cmp_lt_u32 s{sC}, 8")
    A(f"s_cbranch_scc1 {name}_aloop")
    M(OB, VHI, PB + 4, v(OB,16))
    stamp(2)
    A(f"s_mul_i32 s50, s{sKH}, {2*KVSLOT}\ns_lshl_b32 s51, s{sQG}, 12\ns_add_u32 s50, s50, s51")
    A(f"s_xor_b32 s52, s{sKH}, 1\ns_mul_i32 s52, s52, {2*KVSLOT}\ns_add_u32 s52, s52, s51")
    A(f"v_lshlrev_b32 v2, 4, v{LANE}\nv_add_u32 v3, s52, v2\nv_add_u32 v2, s50, v2")
    A("s_waitcnt lgkmcnt(0)")
    A("s_nop 7")
    for q in range(4): A(f"ds_write_b128 v2, {v(OB+4*q,4)} offset:{q*1024}")
    A("s_waitcnt lgkmcnt(0)")
    A("s_barrier")
    for q in range(4): A(f"ds_read_b128 {v(OB+4*q,4)}, v3 offset:{q*1024}")
    A("s_waitcnt lgkmcnt(0)")
    for i in range(13): A(f"v_add_f32 v{O+i}, v{O+i}, v{OB+i}")
    A(f"v_cndmask_b32 v{TMP}, v{O+12}, v{O+8}, s[{sHFM}:{sHFM+1}]")
    A(f"v_cmp_le_f32 vcc, {hex(f32bits(2.0**-60))}, v{TMP}")
    A(f"v_cmp_ge_f32 s[50:51], {hex(0)}, v{TMP}" if False else f"s_mov_b32 s52, {hex(f32bits(2.0**60))}")
    A(f"v_cmp_ge_f32 s[50:51], s52, v{TMP}")
    A("s_nop 1")
    A("s_and_b64 vcc, vcc, s[50:51]")
    A("s_cmp_eq_u64 vcc, exec")
    if force_fallback: A("s_cmp_eq_u32 s2, 0x7fffffff")
    A(f"s_cbranch_scc0 {name}_fallback")
    A.label(f"{name}_aepi")
    A(f"v_rcp_f32 v{TMP}, v{TMP}")
    A(f"s_mul_i32 s50, s{sQT}, 40960\ns_add_u32 s50, s50, {WS_O}")
    A(f"s_mul_i32 s51, s{sHEAD}, 20")
    A(f"v_lshl_add_u32 v2, v{HF}, 2, s51")
    for qd in range(3):
        if qd == 1: A("v_add_u32 v2, 8, v2")
        if qd == 2: A("v_add_u32 v2, 8, v2")
        A("v_lshrrev_b32 v3, 3, v2\nv_lshlrev_b32 v3, 9, v3")
        A("v_and_b32 v4, 4, v2\nv_lshl_add_u32 v3, v4, 1, v3")
        A(f"v_lshl_add_u32 v3, v{TQ}, 4, v3")
        for i in range(4): A(f"v_mul_f32 v{O+4*qd+i}, v{O+4*qd+i}, v{TMP}")
        A(f"v_cvt_pk_bf16_f32 v{P+2*qd}, v{O+4*qd}, v{O+4*qd+1}\nv_cvt_pk_bf16_f32 v{P+2*qd+1}, v{O+4*qd+2}, v{O+4*qd+3}")
        if qd == 2:
            A(f"s_andn2_b64 exec, exec, s[{sHFM}:{sHFM+1}]")
        A(f"buffer_store_dwordx2 {v(P+2*qd,2)}, v3, s[{sWS}:{sWS+3}], s50 offen")
    A("s_mov_b64 exec, -1")
    stamp_out(3, None)
    A(f"s_branch {name}_end")
    A.label(f"{name}_fallback")
    M, AL, VA0, VA1 = TMP + 1, TMP + 2, TMP + 3, TMP + 4
    A(f"v_mov_b32 v{Q2+2}, 0")
    for i in range(16): A(f"v_mov_b32 v{O+i}, 0")
    A(f"v_mov_b32 v{M}, 0xff7fffff")
    A(f"v_lshrrev_b32 v2, 2, v{TQ}\nv_min_u32 v2, 5, v2\nv_mul_u32_u24 v{VA0}, {V_PLANE}, v2")
    A(f"v_and_b32 v2, 3, v{TQ}\nv_lshl_add_u32 v{VA0}, v2, 1, v{VA0}\nv_lshl_add_u32 v{VA0}, v{HF}, 5, v{VA0}")
    A(f"v_add_u32 v{VA0}, {KV_VOFF}, v{VA0}")
    A(f"s_mul_i32 s53, s{sHEAD}, {KV_HEAD}\ns_add_u32 s53, s53, {WS_KV}")
    A("s_mov_b32 s54, 0")
    A.label(f"{name}_floop")
    A(f"s_lshr_b32 s50, s54, 3\ns_mul_i32 s50, s50, {KV_CHUNK}\ns_add_u32 s50, s50, s53\ns_and_b32 s51, s54, 7")
    A(f"s_mul_i32 s52, s51, {V_TILE}\ns_add_u32 s52, s52, s50")
    A(f"s_mul_i32 s51, s51, {QK_TILE}\ns_add_u32 s50, s50, s51")
    A(f"buffer_load_dwordx4 {v(K1,4)}, v{lK1}, s[{sWS}:{sWS+3}], s50 offen")
    A(f"buffer_load_dwordx2 {v(K2,2)}, v{lK2}, s[{sWS}:{sWS+3}], s50 offen")
    for m in range(2):
        for e in range(8):
            A(f"buffer_load_ushort v{S1+8*m+e}, v{VA0}, s[{sWS}:{sWS+3}], s52 offen offset:{(16*m + 8*(e>>2) + (e&3))*8}")
    A("s_waitcnt vmcnt(16)")
    A(f"v_mfma_f32_32x32x16_bf16 {v(S0,16)}, {v(K1,4)}, {v(Q1,4)}, 0")
    A(f"v_mfma_f32_32x32x16_bf16 {v(S0,16)}, {v(K2,4)}, {v(Q2,4)}, {v(S0,16)}")
    A("s_nop 15\ns_nop 3")
    A(f"v_max3_f32 v{AL}, v{S0}, v{S0+1}, v{M}")
    for i in range(2, 16, 2): A(f"v_max3_f32 v{AL}, v{AL}, v{S0+i}, v{S0+i+1}")
    A(f"v_mov_b32 v{VA1}, v{AL}")
    A("s_nop 1")
    A(f"v_permlane32_swap_b32 v{AL}, v{VA1}")
    A("s_nop 1")
    A(f"v_max_f32 v{VA1}, v{AL}, v{VA1}")
    A(f"v_sub_f32 v{AL}, v{M}, v{VA1}")
    A(f"v_exp_f32 v{AL}, v{AL}")
    A(f"v_mov_b32 v{M}, v{VA1}")
    for i in range(16): A(f"v_sub_f32 v{S0+i}, v{S0+i}, v{M}")
    for i in range(16): A(f"v_mul_f32 v{O+i}, v{O+i}, v{AL}")
    for g in range(4): expcvt(S0, 4 * g, 2 * g)
    A("s_waitcnt vmcnt(0)")
    for m in range(2):
        for e in range(4):
            A(f"v_lshl_or_b32 v{(VLO if m == 0 else VHI)+e}, v{S1+8*m+2*e+1}, 16, v{S1+8*m+2*e}")
    A("s_nop 1")
    A(f"v_mfma_f32_32x32x16_bf16 {v(O,16)}, {v(VLO,4)}, {v(P,4)}, {v(O,16)}")
    A(f"v_mfma_f32_32x32x16_bf16 {v(O,16)}, {v(VHI,4)}, {v(P+4,4)}, {v(O,16)}")
    A("s_nop 15\ns_nop 3")
    A("s_add_u32 s54, s54, 1\ns_cmp_lt_u32 s54, 64")
    A(f"s_cbranch_scc1 {name}_floop")
    A(f"v_cndmask_b32 v{TMP}, v{O+12}, v{O+8}, s[{sHFM}:{sHFM+1}]")
    A(f"s_branch {name}_aepi")
    A.label(f"{name}_gemm")
    ACC, WFR, HFR = 8, 88, 108
    VD, VRD, VL16, VX, XR = 124, 129, 130, 131, 132
    sG, sKV, sKVL, sWO, sHO2, sLB, sI, sSL = 45, 46, 47, 48, 49, 52, 53, 54
    srd(A, sX, 4, 5, S * D * 2)
    srd(A, sWD, 6, 7, F * D * 2)
    A(f"s_sub_u32 s{sG}, s{sWAVE}, 8")
    A(f"v_lshlrev_b32 v{VL16}, 4, v{LANE}")
    A(f"s_mul_i32 s{sKV}, s{sHEAD}, {KV_HEAD}\ns_add_u32 s{sKV}, s{sKV}, {WS_KV}\ns_mul_i32 s{sKVL}, s{sG}, 6144\ns_add_u32 s{sKV}, s{sKV}, s{sKVL}")
    def kv_dma(slot_sreg):
        for i in range(6):
            if i % 4 == 0:
                A(f"s_add_u32 m0, s{slot_sreg}, {(i//4)*4096}" if i else f"s_mov_b32 m0, s{slot_sreg}")
                A(f"s_add_u32 s50, s{sKV}, {(i//4)*4096}")
            A(f"buffer_load_dwordx4 v{VL16}, s[{sWS}:{sWS+3}], s50 offen offset:{(i%4)*1024} lds")
        A(f"s_add_u32 s{sKV}, s{sKV}, {KV_CHUNK}")
    A(f"s_mov_b32 s{sSL}, s{sKVL}")
    kv_dma(sSL)
    gemm_lane_setup(A, LANE, None, VD, VRD)
    A(f"s_mul_i32 s{sLB}, s{sG}, {GW_WAVE}\ns_add_u32 s{sLB}, s{sLB}, {GW_BASE}")
    A(f"v_add_u32 v{VRD}, s{sLB}, v{VRD}")
    A(f"s_mul_i32 s{sWO}, s{sG}, {24*20480}\ns_mul_i32 s50, s{sNQ}, 320\ns_add_u32 s{sWO}, s{sWO}, s50")
    A(f"s_mul_i32 s{sHO2}, s{sT}, 96\ns_mul_i32 s50, s{sG}, 24\ns_add_u32 s{sHO2}, s{sHO2}, s50\ns_lshl_b32 s{sHO2}, s{sHO2}, 10\ns_add_u32 s{sHO2}, s{sHO2}, {WS_H}")
    def issue_stage(st, sw, sh):
        for i in range(5):
            A(f"s_add_u32 m0, s{sLB}, {st*GW_STAGE + i*1024}")
            A("s_nop 0")
            A(f"buffer_load_dwordx4 v{VD+i}, s[{sWD}:{sWD+3}], s{sw} offen lds")
        A(f"buffer_load_dwordx4 {v(HFR+4*st,4)}, v{VL16}, s[{sWS}:{sWS+3}], s{sh} offen")
        A(f"s_add_u32 s{sWO}, s{sWO}, 20480\ns_add_u32 s{sHO2}, s{sHO2}, 1024")
    for i in range(80): A(f"v_mov_b32 v{ACC+i}, 0")
    A(f"s_mov_b32 s{sI}, 0")
    A(f"s_add_u32 s{sSL}, s{sKVL}, {KVSLOT}")
    A("s_waitcnt vmcnt(0)")
    A("s_barrier")
    for st in range(3): issue_stage(st, sWO, sHO2)
    A(".p2align 6")
    A.label(f"{name}_gloop")
    kv_dma(sSL)
    A(f"s_add_u32 s{sSL}, s{sSL}, {KVSLOT}\ns_cmp_ge_u32 s{sSL}, {3*KVSLOT}\ns_cselect_b32 s50, {3*KVSLOT}, 0\ns_sub_u32 s{sSL}, s{sSL}, s50")
    for k4 in range(4):
        if abl & 1: continue
        A(f"s_waitcnt vmcnt({18 if k4 < 3 else 12})")
        for t in range(5):
            for j in range(2):
                A(f"ds_read_b64_tr_b16 {v(WFR+4*t+2*j,2)}, v{VRD} offset:{k4*GW_STAGE + j*1280 + t*64}")
        if k4 >= 1:
            A(f"s_cmp_lt_u32 s{sI}, 5\ns_cselect_b32 s50, s{sWO}, 0x40000000\ns_cselect_b32 s51, s{sHO2}, 0x40000000")
            issue_stage((k4 + 3) % 4, 50, 51)
        else:
            issue_stage((k4 + 3) % 4, sWO, sHO2)
        for t in range(5):
            A(f"s_waitcnt lgkmcnt({8-2*t})")
            if not no_gemm:
                A(f"v_mfma_f32_32x32x16_bf16 {v(ACC+16*t,16)}, {v(WFR+4*t,4)}, {v(HFR+4*k4,4)}, {v(ACC+16*t,16)}")
    A("s_waitcnt vmcnt(24)" if not abl & 1 else "s_waitcnt vmcnt(0)")
    A(f"s_cmp_eq_u32 s{sI}, 5\ns_cbranch_scc0 {name}_gnw")
    A("s_waitcnt vmcnt(0)")
    A.label(f"{name}_gnw")
    if not abl & 2: A("s_barrier")
    A(f"s_add_u32 s{sI}, s{sI}, 1\ns_cmp_lt_u32 s{sI}, 6")
    A(f"s_cbranch_scc1 {name}_gloop")
    kv_dma(sSL)
    A(f"v_and_b32 v2, 31, v{LANE}\nv_lshrrev_b32 v3, 5, v{LANE}")
    A(f"s_lshl_b32 s50, s{sT}, 5\nv_add_u32 v2, s50, v2\ns_movk_i32 s50, 1280\nv_mul_lo_u32 v{VX}, v2, s50")
    A(f"v_lshl_add_u32 v{VX}, v3, 3, v{VX}")
    A(f"s_mul_i32 s50, s{sNQ}, 320\ns_lshl_b32 s51, s{sG}, 4\ns_add_u32 s50, s50, s51")
    for t in range(5):
        A(f"buffer_load_dwordx2 {v(XR+2*t,2)}, v{VX}, s[{sX}:{sX+3}], s50 offen offset:{t*64}")
    for aq in range(4):
        A(f"s_cmp_eq_u32 s{sG}, {aq}")
        A(f"s_cbranch_scc1 {name}_rw{aq}")
        A(f"s_sub_u32 s50, s{sG}, {aq+1}\ns_and_b32 s50, s50, 3\ns_mul_i32 s50, s50, 5120\ns_add_u32 s50, s50, {RED_BASE + aq*15360}")
        A(f"v_add_u32 v2, s50, v{VL16}")
        for t in range(5):
            A(f"ds_write_b128 v2, {v(ACC+16*t+4*aq,4)} offset:{t*1024}")
        A.label(f"{name}_rw{aq}")
    for aq in range(4):
        A(f"s_cmp_eq_u32 s{sG}, {aq}")
        A(f"s_cbranch_scc0 {name}_rm{aq}")
        for t in range(5):
            for i in range(4): A(f"v_mov_b32 v{WFR+4*t+i}, v{ACC+16*t+4*aq+i}")
        A.label(f"{name}_rm{aq}")
    A("s_waitcnt vmcnt(5) lgkmcnt(0)")
    if not abl & 2: A("s_barrier")
    A(f"s_mul_i32 s50, s{sG}, 15360\ns_add_u32 s50, s50, {RED_BASE}\nv_add_u32 v2, s50, v{VL16}")
    for sl in range(3):
        for t in range(5):
            A(f"ds_read_b128 {v(ACC+20*sl+4*t,4)}, v2 offset:{sl*5120+t*1024}")
    A("s_waitcnt vmcnt(0) lgkmcnt(0)")
    if not abl & 2: A("s_barrier")
    for sl in range(3):
        for i in range(20): A(f"v_add_f32 v{WFR+i}, v{WFR+i}, v{ACC+20*sl+i}")
    for t in range(5):
        for hlf in range(2):
            A(f"v_lshlrev_b32 v3, 16, v{XR+2*t+hlf}\nv_and_b32 v4, 0xffff0000, v{XR+2*t+hlf}")
            A(f"v_add_f32 v{WFR+4*t+2*hlf}, v{WFR+4*t+2*hlf}, v3\nv_add_f32 v{WFR+4*t+2*hlf+1}, v{WFR+4*t+2*hlf+1}, v4")
    A(f"s_mul_i32 s50, s{sT}, 20\ns_mul_i32 s51, s{sNQ}, 5\ns_add_u32 s50, s50, s51\ns_lshl_b32 s50, s50, 2\ns_add_u32 s50, s50, s{sG}\ns_lshl_b32 s50, s50, 10\ns_add_u32 s50, s50, {WS_Y}")
    for t in range(5):
        A(f"buffer_store_dwordx4 {v(WFR+4*t,4)}, v{VL16}, s[{sWS}:{sWS+3}], s50 offen")
        if t < 4: A("s_add_u32 s50, s50, 4096")
    A("s_barrier")
    stamp_out(1, None)
    A.label(f"{name}_end")
    rt_end(A, rt, 1, sWS, name)
    A("s_waitcnt vmcnt(0)")
    A("s_endpgm")
    return A.text(), kernel_desc(name, 168, 168)
```

```python
from common import *
from k2 import gemm_lane_setup
NW = 4
KS = 40 // NW
K3_LDS = NW * KS * 5120 if NW * KS * 5120 <= 160 * 1024 else None
def gen_k3(name="k3_kernel", rt=False, stamps=False):
    A = Asm()
    A.raw(kernel_header(name))
    LANE = 1
    sWS, sWOs, sOUT = 24, 28, 32
    sG, sT, sNQ, sLB, sWO, sHO = 40, 41, 42, 43, 44, 45
    ACC, WFR, OFR = 8, 88, 108
    VD, VRD, VL16, VOUT, YR = 150, 155, 156, 157, 160
    NST = 7
    A("s_cmp_ge_u32 s2, 256")
    A(f"s_cbranch_scc1 {name}_end")
    rt_begin(A, rt)
    stamp = mk_stamp(A, stamps)
    stamp(0)
    A("s_load_dwordx2 s[4:5], s[0:1], 16")
    A("s_load_dwordx2 s[6:7], s[0:1], 56")
    A("s_load_dwordx2 s[8:9], s[0:1], 72")
    A(f"v_and_b32 v{LANE}, 63, v0")
    A("v_lshrrev_b32 v2, 6, v0")
    A("s_and_b32 s50, s2, 7\ns_lshr_b32 s51, s2, 3")
    A(f"v_readfirstlane_b32 s{sG}, v2")
    A(f"s_and_b32 s{sT}, s51, 7\ns_lshl_b32 s52, s50, 3\ns_add_u32 s{sT}, s{sT}, s52")
    A(f"s_lshr_b32 s{sNQ}, s51, 3")
    A(f"v_lshlrev_b32 v{VL16}, 4, v{LANE}")
    gemm_lane_setup(A, LANE, None, VD, VRD)
    A(f"s_mul_i32 s{sLB}, s{sG}, {NST*5120}")
    A(f"v_add_u32 v{VRD}, s{sLB}, v{VRD}")
    A(f"s_mul_i32 s{sWO}, s{sG}, {KS*20480}\ns_mul_i32 s50, s{sNQ}, 320\ns_add_u32 s{sWO}, s{sWO}, s50")
    A(f"s_mul_i32 s{sHO}, s{sT}, 40\ns_mul_i32 s50, s{sG}, {KS}\ns_add_u32 s{sHO}, s{sHO}, s50\ns_lshl_b32 s{sHO}, s{sHO}, 10\ns_add_u32 s{sHO}, s{sHO}, {WS_O}")
    A("s_waitcnt lgkmcnt(0)")
    stamp(1)
    srd(A, sWS, 8, 9, WS_SIZE)
    srd(A, sWOs, 4, 5, D * D * 2)
    srd(A, sOUT, 6, 7, S * D * 2)
    def issue(k):
        st = k % NST
        A(f"buffer_load_dwordx4 {v(OFR+4*k,4)}, v{VL16}, s[{sWS}:{sWS+3}], s{sHO} offen")
        for i in range(5):
            A(f"s_add_u32 m0, s{sLB}, {st*5120 + i*1024}")
            A("s_nop 0")
            A(f"buffer_load_dwordx4 v{VD+i}, s[{sWOs}:{sWOs+3}], s{sWO} offen lds")
        A(f"s_add_u32 s{sWO}, s{sWO}, 20480\ns_add_u32 s{sHO}, s{sHO}, 1024")
    for k in range(NST): issue(k)
    A(f"s_mul_i32 s50, s{sT}, 20\ns_mul_i32 s51, s{sNQ}, 5\ns_add_u32 s50, s50, s51\ns_lshl_b32 s50, s50, 2\ns_add_u32 s50, s50, s{sG}\ns_lshl_b32 s50, s50, 10\ns_add_u32 s50, s50, {WS_Y}")
    for t in range(5):
        A(f"buffer_load_dwordx4 {v(YR+4*t,4)}, v{VL16}, s[{sWS}:{sWS+3}], s50 offen")
        if t < 4: A("s_add_u32 s50, s50, 4096")
    for i in range(80): A(f"v_mov_b32 v{ACC+i}, 0")
    A(f"v_and_b32 v2, 31, v{LANE}\nv_lshrrev_b32 v3, 5, v{LANE}")
    A(f"s_lshl_b32 s50, s{sT}, 5\nv_add_u32 v2, s50, v2\ns_movk_i32 s50, 1280\nv_mul_lo_u32 v{VOUT}, v2, s50")
    A(f"v_lshl_add_u32 v{VOUT}, v3, 3, v{VOUT}")
    A(f"s_mul_i32 s50, s{sNQ}, 320\ns_lshl_b32 s51, s{sG}, 4\ns_add_u32 s50, s50, s51\nv_add_u32 v{VOUT}, s50, v{VOUT}")
    stamp(2)
    issued = NST
    order = [("k", k) for k in range(NST)] + [("y", 0)]
    for k in range(KS):
        idx = order.index(("k", k))
        n = sum(6 if o[0] == "k" else 5 for o in order[idx + 1:])
        A(f"s_waitcnt vmcnt({n})")
        st = k % NST
        if k == 0: stamp(3)
        for t in range(5):
            for j in range(2):
                A(f"ds_read_b64_tr_b16 {v(WFR+4*t+2*j,2)}, v{VRD} offset:{st*5120 + j*1280 + t*64}")
        for t in range(5):
            A(f"s_waitcnt lgkmcnt({8-2*t})")
            A(f"v_mfma_f32_32x32x16_bf16 {v(ACC+16*t,16)}, {v(WFR+4*t,4)}, {v(OFR+4*k,4)}, {v(ACC+16*t,16)}")
        if issued < KS:
            issue(issued); order.append(("k", issued)); issued += 1
    stamp(4)
    A("s_barrier")
    A("s_nop 7")
    for aq in range(4):
        A(f"s_cmp_eq_u32 s{sG}, {aq}")
        A(f"s_cbranch_scc1 {name}_rw{aq}")
        A(f"s_sub_u32 s50, s{sG}, {aq+1}\ns_and_b32 s50, s50, 3\ns_mul_i32 s50, s50, 5120\ns_add_u32 s50, s50, {aq*15360}")
        A(f"v_add_u32 v2, s50, v{VL16}")
        for t in range(5):
            A(f"ds_write_b128 v2, {v(ACC+16*t+4*aq,4)} offset:{t*1024}")
        A.label(f"{name}_rw{aq}")
    A("s_waitcnt vmcnt(0)")
    for aq in range(4):
        A(f"s_cmp_eq_u32 s{sG}, {aq}")
        A(f"s_cbranch_scc0 {name}_rm{aq}")
        for t in range(5):
            for i in range(4): A(f"v_add_f32 v{YR+4*t+i}, v{YR+4*t+i}, v{ACC+16*t+4*aq+i}")
        A.label(f"{name}_rm{aq}")
    A("s_waitcnt lgkmcnt(0)")
    A("s_barrier")
    stamp(5)
    A(f"s_mul_i32 s50, s{sG}, 15360\nv_add_u32 v2, s50, v{VL16}")
    for sl in range(3):
        for t in range(5):
            A(f"ds_read_b128 {v(ACC+20*sl+4*t,4)}, v2 offset:{sl*5120+t*1024}")
    for sl in range(3):
        A(f"s_waitcnt lgkmcnt({10-5*sl})")
        for i in range(20): A(f"v_add_f32 v{YR+i}, v{YR+i}, v{ACC+20*sl+i}")
    for t in range(5):
        A(f"v_cvt_pk_bf16_f32 v{WFR+2*t}, v{YR+4*t}, v{YR+4*t+1}\nv_cvt_pk_bf16_f32 v{WFR+2*t+1}, v{YR+4*t+2}, v{YR+4*t+3}")
        A(f"buffer_store_dwordx2 {v(WFR+2*t,2)}, v{VOUT}, s[{sOUT}:{sOUT+3}], 0 offen offset:{t*64}")
    A.label(f"{name}_end")
    rt_end(A, rt, 2, sWS, name)
    stamp_dump(A, stamps, 6, sWS, NW, name)
    A("s_waitcnt vmcnt(0)")
    A("s_endpgm")
    return A.text(), kernel_desc(name, 180, 180), NW * NST * 5120
```

```python
import sys
sys.path.insert(0, "gen")
from common import *
from build import build, check
import k0, k1b, k2, k3
def opts(tag):
    d = {}
    for a in sys.argv:
        if a.startswith(f"--{tag}:"):
            for x in a[len(tag)+3:].split(","):
                k, v_ = x.split("=")
                d[k] = tuple(int(c) for c in v_.split("/")) if "/" in v_ else int(v_)
    return d
rt = "--rt" in sys.argv
out = [a for a in sys.argv[1:] if a.endswith(".s")][0]
t0, d0 = k0.gen_k0(rt=rt, **opts("k0"))
t1, d1 = k1b.gen_k1(rt=rt, **opts("k1"))
t2, d2 = k2.gen_k2(rt=rt, force_fallback="--fallback" in sys.argv, **opts("k2"))
t3, d3, l3 = k3.gen_k3(rt=rt, **opts("k3"))
build([("k0_kernel", t0, d0, 256, 256, 0), ("k1_kernel", t1, d1, 256, 512, k1b.K1_LDS), ("k2_kernel", t2, d2, 256, 768, k2.K2_LDS), ("k3_kernel", t3, d3, 256, 256, l3)], out)
check(out)
```

```python
from common import *
import struct
def f32bits(x): return struct.unpack("<I", struct.pack("<f", x))[0]
def gen_k0(name="k0_kernel", rt=False, prefetch=1):
    A = Asm()
    A.raw(kernel_header(name))
    sX, sWS, sP = 24, 28, 32
    X, DD, XC = 16, 40, 80
    A("s_cmp_ge_u32 s2, 256")
    A(f"s_cbranch_scc1 {name}_end")
    rt_begin(A, rt)
    A("s_load_dwordx16 s[4:19], s[0:1], 0")
    A("s_load_dwordx2 s[20:21], s[0:1], 72")
    A("v_and_b32 v1, 63, v0")
    A("v_lshrrev_b32 v2, 6, v0")
    A("v_and_b32 v3, 15, v1")
    A("v_readfirstlane_b32 s40, v2")
    A("v_lshrrev_b32 v4, 4, v1")
    A("s_lshl_b32 s41, s2, 3")
    A("s_and_b32 s42, s40, 1\ns_lshl_b32 s42, s42, 2\ns_add_u32 s41, s41, s42")
    A("v_add_u32 v5, s41, v4")
    A("s_movk_i32 s42, 1280")
    A("v_mul_lo_u32 v6, v5, s42")
    A("v_lshl_add_u32 v6, v3, 4, v6")
    A("v_lshlrev_b32 v14, 4, v1")
    A("s_waitcnt lgkmcnt(0)")
    srd(A, sX, 4, 5, S * D * 2)
    srd(A, sWS, 20, 21, WS_SIZE)
    A(f"s_lshl_b32 s42, s2, 2\ns_add_u32 s42, s42, s40\ns_cmp_eq_u32 s42, 3\ns_cbranch_scc0 {name}_nz")
    A(f"v_lshlrev_b32 v15, 8, v1\nv_add_u32 v15, {WS_FLAG}, v15\nv_mov_b32 v13, 0")
    A(f"buffer_store_dword v13, v15, s[{sWS}:{sWS+3}], 0 offen")
    A.label(f"{name}_nz")
    A("s_cmp_ge_u32 s40, 2")
    A(f"s_cbranch_scc1 {name}_pf")
    for j in range(5):
        A(f"buffer_load_dwordx4 {v(X+4*j,4)}, v6, s[{sX}:{sX+3}], 0 offen offset:{j*256}")
    A.label(f"{name}_pf")
    if prefetch:
        A("s_lshl_b32 s43, s2, 2\ns_add_u32 s43, s43, s40\ns_lshl_b32 s43, s43, 10")
        for (lo, size) in ((6, D * 1920 * 2), (12, D * F * 2), (14, D * F * 2), (16, F * D * 2), (8, D * D * 2)):
            srd(A, sP, lo, lo + 1, size)
            for i in range((size + (1 << 20) - 1) >> 20):
                A(f"s_add_u32 s44, s43, {i << 20}")
                A(f"buffer_load_dwordx4 v[120:123], v14, s[{sP}:{sP+3}], s44 offen")
    npf = 3 + 2 + 2 + 2 + 1 if prefetch else 0
    A("s_cmp_ge_u32 s40, 2")
    A(f"s_cbranch_scc1 {name}_end")
    A("v_lshrrev_b32 v7, 5, v5\ns_mov_b32 s42, 40960\nv_mul_lo_u32 v7, v7, s42")
    A("v_and_b32 v8, 31, v5\nv_lshl_add_u32 v7, v8, 4, v7")
    A("v_lshl_add_u32 v7, v3, 9, v7")
    A(f"v_add_u32 v7, {WS_XN}, v7")
    A("v_mov_b32 v9, 0x3f803f80\nv_mov_b32 v10, 0\nv_mov_b32 v11, 0")
    A(f"s_waitcnt vmcnt({npf})")
    for i in range(20): A(f"v_dot2c_f32_bf16 v{10+(i&1)}, v{X+i}, v9")
    A("s_nop 3")
    A("v_add_f32 v10, v10, v11")
    def rowsum(r):
        for sh in (8, 4, 2, 1):
            A("s_nop 1")
            A(f"v_add_f32_dpp v{r}, v{r}, v{r} row_ror:{sh} row_mask:0xf bank_mask:0xf")
    rowsum(10)
    A(f"v_mul_f32 v10, {hex(f32bits(1.0/640))}, v10")
    A("v_cvt_pk_bf16_f32 v11, v10, v10\nv_and_b32 v11, 0xffff0000, v11")
    A("v_sub_f32 v10, v10, v11")
    A("v_mov_b32 v12, 0\nv_mov_b32 v13, 0")
    for i in range(20):
        A(f"v_lshlrev_b32 v{DD+2*i}, 16, v{X+i}\nv_and_b32 v{DD+2*i+1}, 0xffff0000, v{X+i}")
        A(f"v_sub_f32 v{DD+2*i}, v{DD+2*i}, v11\nv_sub_f32 v{DD+2*i+1}, v{DD+2*i+1}, v11")
        A(f"v_fmac_f32 v12, v{DD+2*i}, v{DD+2*i}\nv_fmac_f32 v13, v{DD+2*i+1}, v{DD+2*i+1}")
        A(f"v_cvt_pk_bf16_f32 v{XC+i}, v{DD+2*i}, v{DD+2*i+1}")
    A("v_add_f32 v12, v12, v13")
    rowsum(12)
    A(f"v_mul_f32 v12, {hex(f32bits(1.0/640))}, v12")
    A("v_fma_f32 v12, -v10, v10, v12")
    A("v_max_f32 v12, 0, v12")
    A("v_cvt_pk_bf16_f32 v12, v12, v12\nv_lshlrev_b32 v12, 16, v12")
    A(f"v_add_f32 v12, {hex(f32bits(1e-5))}, v12")
    A("v_cvt_pk_bf16_f32 v12, v12, v12\nv_lshlrev_b32 v12, 16, v12")
    A("v_sqrt_f32 v12, v12")
    A("s_nop 0")
    A("v_cvt_pk_bf16_f32 v12, v12, v12\nv_lshlrev_b32 v12, 16, v12")
    A("v_rcp_f32 v13, v12")
    A("s_nop 0")
    A("v_fma_f32 v10, -v12, v13, 1.0\nv_fma_f32 v13, v10, v13, v13")
    for i in range(20):
        A(f"v_lshlrev_b32 v{DD+2*i}, 16, v{XC+i}\nv_and_b32 v{DD+2*i+1}, 0xffff0000, v{XC+i}")
        A(f"v_mul_f32 v{DD+2*i}, v{DD+2*i}, v13\nv_mul_f32 v{DD+2*i+1}, v{DD+2*i+1}, v13")
        A(f"v_cvt_pk_bf16_f32 v{X+i}, v{DD+2*i}, v{DD+2*i+1}")
    for j in range(5):
        if j: A("v_add_u32 v7, 8192, v7")
        A(f"buffer_store_dwordx4 {v(X+4*j,4)}, v7, s[{sWS}:{sWS+3}], 0 offen")
    A.label(f"{name}_end")
    rt_end(A, rt, 3, sWS, name)
    A("s_endpgm")
    return A.text(), kernel_desc(name, 128, 128)
```

```python
from common import *
import struct
def f32bits(x): return struct.unpack("<I", struct.pack("<f", x))[0]
NSLOT = 5
P1OFF = 10272
XOFF = 21536
SLOT = XOFF + 8192
K1_LDS = NSLOT * SLOT

def gen_k1(name="k1_kernel", rt=False, stamps=False, map_mode=0, perm=1, rotate=1, dma_gaps=(8, 9, 0, 1), wait_every=2, exp=0, Dahead=6, fuse=0, sleep0=32, sleep1=8):
    A = Asm()
    stamp = mk_stamp(A, stamps)
    A.raw(kernel_header(name))
    WF, XC = 24, 64
    RD, LP, XRD, XLP, VL16 = 72, 73, 74, 75, 76
    DMA = 77
    MF = 80
    LANE = 1
    sW, sWS = 28, 32
    sWAVE, sMB, sNB, sLDW, sDOFF, sSTEP, sWR, sRD, sC, sWRC = 40, 41, 42, 43, 44, 45, 47, 48, 49, 46
    sM0 = 52
    sTG, sPH, sXO, sTAU, sCOL, sXB = 56, 57, 58, 59, 65, 68
    sROW0, sHS, sHO, sHFM = 62, 63, 64, 66
    A("s_cmp_ge_u32 s2, 256")
    A(f"s_cbranch_scc1 {name}_end")
    rt_begin(A, rt)
    stamp(0)
    A("s_load_dwordx16 s[4:19], s[0:1], 0")
    A("s_load_dwordx4 s[20:23], s[0:1], 64")
    A(f"v_and_b32 v{LANE}, 63, v0")
    A("v_lshrrev_b32 v2, 6, v0")
    A("s_and_b32 s50, s2, 7\ns_lshr_b32 s51, s2, 3")
    A(f"v_readfirstlane_b32 s{sWAVE}, v2")
    if map_mode == 0:
        A(f"s_and_b32 s{sMB}, s50, 1\ns_lshl_b32 s{sMB}, s{sMB}, 3\ns_and_b32 s60, s51, 7\ns_add_u32 s{sMB}, s{sMB}, s60")
        A(f"s_lshr_b32 s{sNB}, s50, 1\ns_lshl_b32 s{sNB}, s{sNB}, 2\ns_lshr_b32 s60, s51, 3\ns_add_u32 s{sNB}, s{sNB}, s60")
    else:
        A(f"s_and_b32 s{sMB}, s50, 3\ns_lshl_b32 s{sMB}, s{sMB}, 2\ns_and_b32 s60, s51, 3\ns_add_u32 s{sMB}, s{sMB}, s60")
        A(f"s_lshr_b32 s{sNB}, s50, 2\ns_lshl_b32 s{sNB}, s{sNB}, 3\ns_lshr_b32 s60, s51, 2\ns_add_u32 s{sNB}, s{sNB}, s60")
    A(f"s_mov_b32 s69, s{sNB}")
    if perm:
        order = [0, 1, 6, 7, 2, 3, 8, 9, 4, 10, 11, 12, 5, 13, 14, 15] if map_mode == 0 else [0, 1, 2, 6, 7, 8, 9, 10, 3, 4, 5, 11, 12, 13, 14, 15]
        tab = sum(o << (4 * i) for i, o in enumerate(order))
        A(f"s_mov_b32 s60, {hex(tab & 0xffffffff)}\ns_mov_b32 s61, {hex(tab >> 32)}\ns_lshl_b32 s{sNB}, s{sNB}, 2\ns_lshr_b64 s[60:61], s[60:61], s{sNB}\ns_and_b32 s{sNB}, s60, 15")
    A(f"s_and_b32 s{sTG}, s{sWAVE}, 3\ns_lshr_b32 s{sPH}, s{sWAVE}, 2")
    A(f"s_lshl_b32 s{sROW0}, s{sMB}, 7\ns_lshl_b32 s60, s{sTG}, 5\ns_add_u32 s{sROW0}, s{sROW0}, s60")
    if rotate:
        A(f"s_add_u32 s60, s{sMB}, s{sNB}\ns_mul_i32 s60, s60, 3\ns_mul_i32 s61, s60, 205\ns_lshr_b32 s61, s61, 12\ns_mul_i32 s61, s61, 20\ns_sub_u32 s{sTAU}, s60, s61")
    else:
        A(f"s_mov_b32 s{sTAU}, 0")
    A(f"v_lshlrev_b32 v{VL16}, 4, v{LANE}")
    A(f"s_cmp_lt_u32 s{sNB}, 6")
    A(f"s_cselect_b32 s{sLDW}, 3840, 0\ns_cselect_b32 s60, 0, 3072\ns_add_u32 s{sLDW}, s{sLDW}, s60")
    A(f"s_mul_i32 s{sCOL}, s{sNB}, 640\ns_mul_i32 s51, s{sPH}, 320\ns_add_u32 s{sCOL}, s{sCOL}, s51")
    A(f"s_sub_u32 s60, s{sNB}, 6\ns_mul_i32 s60, s60, 320")
    A(f"s_cmp_lt_u32 s{sNB}, 6\ns_cselect_b32 s{sCOL}, s{sCOL}, s60")
    A(f"s_lshl_b32 s{sSTEP}, s{sLDW}, 5")
    A(f"s_mul_i32 s51, s{sTG}, 192")
    A("s_movk_i32 s60, 3277")
    A(f"s_mul_i32 s50, s{sPH}, {P1OFF}")
    A(f"s_mul_i32 s61, s{sTG}, 3072\ns_add_u32 s50, s50, s61")
    for j in range(3):
        A(f"v_add_u32 v5, s51, v{LANE}")
        if j: A(f"v_add_u32 v5, {j*64}, v5")
        A("v_mul_lo_u32 v6, v5, s60")
        A("v_lshrrev_b32 v6, 16, v6")
        A("v_mul_u32_u24 v7, 20, v6")
        A("v_sub_u32 v7, v5, v7")
        A(f"v_mul_lo_u32 v6, v6, s{sLDW}")
        A(f"v_lshl_add_u32 v{DMA+j}, v7, 4, v6")
        A(f"s_add_u32 s{sM0+j}, s50, {j*1024}")
        if j > 0:
            A(f"s_cmp_eq_u32 s{sTG}, 3")
            A(f"s_cselect_b32 s{sM0+j}, 20512, s{sM0+j}")
            A(f"s_cselect_b32 s61, 0x7ff00000, 0")
            A(f"v_or_b32 v{DMA+j}, s61, v{DMA+j}")
    A(f"s_lshl_b32 s60, s{sTG}, 11\ns_lshl_b32 s61, s{sPH}, 10\ns_add_u32 s60, s60, s61\ns_add_u32 s{sM0+3}, s60, {XOFF}")
    A(f"s_lshr_b32 s{sXB}, s{sROW0}, 5\ns_mul_i32 s{sXB}, s{sXB}, 40960\ns_add_u32 s{sXB}, s{sXB}, s61\ns_add_u32 s{sXB}, s{sXB}, {WS_XN}")
    A("s_waitcnt lgkmcnt(0)")
    srd(A, sWS, 22, 23, WS_SIZE)
    A(f"s_cmp_lt_u32 s{sNB}, 6")
    A(f"s_cbranch_scc0 {name}_gu_src")
    A(f"s_mov_b32 s{sW}, s6\ns_and_b32 s{sW+1}, s7, 0xffff\ns_mov_b32 s{sW+2}, {D*1920*2}")
    A(f"s_branch {name}_src_done")
    A.label(f"{name}_gu_src")
    A(f"s_cmp_eq_u32 s{sPH}, 0")
    A(f"s_cselect_b32 s{sW}, s12, s14\ns_cselect_b32 s{sW+1}, s13, s15")
    A(f"s_and_b32 s{sW+1}, s{sW+1}, 0xffff\ns_mov_b32 s{sW+2}, {D*F*2}")
    A.label(f"{name}_src_done")
    A(f"s_mov_b32 s{sW+3}, 0x00020000")
    def src_ops():
        return [f"s_mul_i32 s50, s{sTAU}, s{sSTEP}", f"s_add_u32 s50, s50, s{sCOL}", f"s_lshl_b32 s51, s{sTAU}, 11", f"s_add_u32 s51, s51, s{sXB}",
                f"s_add_u32 s{sTAU}, s{sTAU}, 1", f"s_cmp_ge_u32 s{sTAU}, 20", f"s_cselect_b32 s{sTAU}, 0, s{sTAU}"]
    def dma_i(j, slot_expr):
        m0 = f"s_add_u32 m0, s{sM0+j}, {slot_expr}"
        ld = f"buffer_load_dwordx4 v{DMA+j}, s[{sW}:{sW+3}], s50 offen lds" if j < 3 else f"buffer_load_dwordx4 v{VL16}, s[{sWS}:{sWS+3}], s51 offen lds"
        return m0, ld
    NPRE = NSLOT - 1
    def pre_chunk(c, which=(3, 0, 1, 2), src=True):
        if src:
            for o in src_ops(): A(o)
        for j in which:
            m0, ld = dma_i(j, c * SLOT)
            if j == 3 and fuse: ld = ld.replace(" lds", " sc1 lds")
            A(m0); A("s_nop 0"); A(ld)
    def setup_addrs():
        A(f"v_and_b32 v6, 31, v{LANE}\nv_lshrrev_b32 v7, 5, v{LANE}")
        A(f"v_cmp_lt_u32 s[{sHFM}:{sHFM+1}], 31, v{LANE}")
        A(f"v_and_b32 v21, 15, v{LANE}\nv_lshrrev_b32 v22, 2, v21\nv_lshl_add_u32 v22, v7, 3, v22")
        A(f"v_mul_u32_u24 v{LP}, 320, v22\nv_and_b32 v22, 3, v21\nv_lshl_add_u32 v{LP}, v22, 3, v{LP}")
        A(f"v_bfe_u32 v22, v{LANE}, 4, 1\nv_mul_u32_u24 v22, {P1OFF}, v22\nv_add_u32 v{LP}, v22, v{LP}")
        A(f"s_mul_i32 s60, s{sPH}, 160\nv_add_u32 v{LP}, s60, v{LP}\nv_mov_b32 v{RD}, v{LP}")
        A(f"s_lshl_b32 s60, s{sTG}, 11\ns_add_u32 s60, s60, {XOFF}\nv_add_u32 v{XLP}, s60, v{VL16}\nv_mov_b32 v{XRD}, v{XLP}")
        for i in range(80): A(f"v_accvgpr_write_b32 a{i}, 0")
        A(f"s_mov_b32 s{sC}, 0\ns_mov_b32 s{sRD}, 0\ns_mov_b32 s{sWR}, {NPRE*SLOT}\ns_mov_b32 s{sWRC}, {NPRE*SLOT}")
    if not fuse:
        pre_chunk(0)
        stamp(1)
        pre_chunk(1)
        setup_addrs()
        A("s_waitcnt vmcnt(4)")
        A("s_barrier")
    else:
        B = 88
        X, DD = B + 16, B + 40
        XCC = X
        sX, sP, sDBG = 24, 36, 72
        srd(A, sX, 4, 5, S * D * 2)
        srd(A, sDBG, 20, 21, 256)
        A(f"s_cmp_ge_u32 s{sWAVE}, 2")
        A(f"s_cbranch_scc1 {name}_noln1")
        A(f"v_and_b32 v{B+3}, 15, v{LANE}\nv_lshrrev_b32 v{B+4}, 4, v{LANE}")
        A(f"s_lshl_b32 s60, s{sMB}, 7\ns_lshl_b32 s61, s69, 3\ns_add_u32 s60, s60, s61\ns_lshl_b32 s61, s{sWAVE}, 2\ns_add_u32 s60, s60, s61")
        A(f"v_add_u32 v{B+5}, s60, v{B+4}\ns_movk_i32 s61, 1280\nv_mul_lo_u32 v{B+6}, v{B+5}, s61\nv_lshl_add_u32 v{B+6}, v{B+3}, 4, v{B+6}")
        for j in range(5):
            A(f"buffer_load_dwordx4 {v(X+4*j,4)}, v{B+6}, s[{sX}:{sX+3}], 0 offen offset:{j*256}")
        A.label(f"{name}_noln1")
        pre_chunk(0, which=(0, 1, 2)); A("s_mov_b32 s98, s51")
        pre_chunk(1, which=(0, 1, 2)); A("s_mov_b32 s99, s51")
        stamp(1)
        A(f"s_cmp_ge_u32 s{sWAVE}, 2")
        A(f"s_cbranch_scc1 {name}_noln2")
        A(f"v_lshrrev_b32 v{B+7}, 5, v{B+5}\ns_mov_b32 s61, 40960\nv_mul_lo_u32 v{B+7}, v{B+7}, s61")
        A(f"v_and_b32 v{B+8}, 31, v{B+5}\nv_lshl_add_u32 v{B+7}, v{B+8}, 4, v{B+7}\nv_lshl_add_u32 v{B+7}, v{B+3}, 9, v{B+7}\nv_add_u32 v{B+7}, {WS_XN}, v{B+7}")
        A(f"v_mov_b32 v{B+9}, 0x3f803f80\nv_mov_b32 v{B+10}, 0\nv_mov_b32 v{B+11}, 0")
        A("s_waitcnt vmcnt(6)")
        for i in range(20): A(f"v_dot2c_f32_bf16 v{B+10+(i&1)}, v{X+i}, v{B+9}")
        A("s_nop 3")
        A(f"v_add_f32 v{B+10}, v{B+10}, v{B+11}")
        def rowsum(r):
            for sh in (8, 4, 2, 1):
                A("s_nop 1")
                A(f"v_add_f32_dpp v{r}, v{r}, v{r} row_ror:{sh} row_mask:0xf bank_mask:0xf")
        rowsum(B + 10)
        A(f"v_mul_f32 v{B+10}, {hex(f32bits(1.0/640))}, v{B+10}")
        A(f"v_cvt_pk_bf16_f32 v{B+11}, v{B+10}, v{B+10}\nv_and_b32 v{B+11}, 0xffff0000, v{B+11}")
        A(f"v_sub_f32 v{B+10}, v{B+10}, v{B+11}")
        A(f"v_mov_b32 v{B+12}, 0\nv_mov_b32 v{B+13}, 0")
        for i in range(20):
            A(f"v_lshlrev_b32 v{DD+2*i}, 16, v{X+i}\nv_and_b32 v{DD+2*i+1}, 0xffff0000, v{X+i}")
            A(f"v_sub_f32 v{DD+2*i}, v{DD+2*i}, v{B+11}\nv_sub_f32 v{DD+2*i+1}, v{DD+2*i+1}, v{B+11}")
            A(f"v_fmac_f32 v{B+12}, v{DD+2*i}, v{DD+2*i}\nv_fmac_f32 v{B+13}, v{DD+2*i+1}, v{DD+2*i+1}")
            A(f"v_cvt_pk_bf16_f32 v{XCC+i}, v{DD+2*i}, v{DD+2*i+1}")
        A(f"v_add_f32 v{B+12}, v{B+12}, v{B+13}")
        rowsum(B + 12)
        r = B + 12
        A(f"v_mul_f32 v{r}, {hex(f32bits(1.0/640))}, v{r}")
        A(f"v_fma_f32 v{r}, -v{B+10}, v{B+10}, v{r}\nv_max_f32 v{r}, 0, v{r}")
        A(f"v_cvt_pk_bf16_f32 v{r}, v{r}, v{r}\nv_lshlrev_b32 v{r}, 16, v{r}")
        A(f"v_add_f32 v{r}, {hex(f32bits(1e-5))}, v{r}")
        A(f"v_cvt_pk_bf16_f32 v{r}, v{r}, v{r}\nv_lshlrev_b32 v{r}, 16, v{r}")
        A(f"v_sqrt_f32 v{r}, v{r}\ns_nop 0")
        A(f"v_cvt_pk_bf16_f32 v{r}, v{r}, v{r}\nv_lshlrev_b32 v{r}, 16, v{r}")
        A(f"v_rcp_f32 v{B+13}, v{r}\ns_nop 0")
        A(f"v_fma_f32 v{B+10}, -v{r}, v{B+13}, 1.0\nv_fma_f32 v{B+13}, v{B+10}, v{B+13}, v{B+13}")
        for i in range(20):
            A(f"v_lshlrev_b32 v{DD+2*i}, 16, v{XCC+i}\nv_and_b32 v{DD+2*i+1}, 0xffff0000, v{XCC+i}")
            A(f"v_mul_f32 v{DD+2*i}, v{DD+2*i}, v{B+13}\nv_mul_f32 v{DD+2*i+1}, v{DD+2*i+1}, v{B+13}")
            A(f"v_cvt_pk_bf16_f32 v{X+i}, v{DD+2*i}, v{DD+2*i+1}")
        for j in range(5):
            if j: A(f"v_add_u32 v{B+7}, 8192, v{B+7}")
            A(f"buffer_store_dwordx4 {v(X+4*j,4)}, v{B+7}, s[{sWS}:{sWS+3}], 0 offen sc1")
        setup_addrs()
        A("s_waitcnt vmcnt(0)")
        A(f"s_branch {name}_lnbar")
        A.label(f"{name}_noln2")
        setup_addrs()
        A(f"s_mul_i32 s60, s2, 6\ns_add_u32 s60, s60, s{sWAVE}\ns_sub_u32 s60, s60, 2\ns_lshl_b32 s60, s60, 10")
        srd(A, sP, 16, 17, F * D * 2)
        A(f"buffer_load_dwordx4 v[100:103], v{VL16}, s[{sP}:{sP+3}], s60 offen")
        A(f"s_add_u32 s61, s60, {1536*1024}")
        A(f"buffer_load_dwordx4 v[100:103], v{VL16}, s[{sP}:{sP+3}], s61 offen")
        srd(A, sP, 8, 9, D * D * 2)
        A(f"buffer_load_dwordx4 v[100:103], v{VL16}, s[{sP}:{sP+3}], s60 offen")
        A(f"s_cmp_eq_u32 s60, 0\ns_cbranch_scc0 {name}_nz")
        A(f"v_lshlrev_b32 v104, 8, v{LANE}\nv_add_u32 v104, {WS_FLAG}, v104\nv_mov_b32 v105, 0")
        A(f"buffer_store_dword v105, v104, s[{sWS}:{sWS+3}], 0 offen")
        A.label(f"{name}_nz")
        A.label(f"{name}_lnbar")
        A("s_barrier")
        A(f"s_cmp_eq_u32 s{sWAVE}, 7")
        A(f"s_cbranch_scc0 {name}_lnjoin")
        A(f"v_mov_b32 v104, 0\nv_mov_b32 v105, 1\ns_lshl_b32 s61, s{sMB}, 4\ns_add_u32 s50, s61, s69\ns_mov_b32 s60, 0")
        A("s_mov_b64 exec, 1")
        A(f"buffer_store_byte v105, v104, s[{sDBG}:{sDBG+3}], s50 offen sc1")
        if sleep0: A(f"s_sleep {sleep0}")
        A.label(f"{name}_poll")
        A(f"buffer_load_dwordx4 v[108:111], v104, s[{sDBG}:{sDBG+3}], s61 offen sc1")
        A("s_add_u32 s60, s60, 1")
        A("s_waitcnt vmcnt(0)")
        A("v_and_b32 v108, v108, v109\nv_and_b32 v110, v110, v111\nv_and_b32 v108, v108, v110")
        A("s_nop 0")
        A("v_readfirstlane_b32 s50, v108")
        A("s_nop 3")
        A("s_cmp_eq_u32 s50, 0x01010101")
        A(f"s_cbranch_scc1 {name}_go")
        A(f"s_sleep {sleep1}")
        A("s_cmp_lt_u32 s60, 0x40000")
        A(f"s_cbranch_scc1 {name}_poll")
        A.label(f"{name}_go")
        A("s_mov_b64 exec, -1")
        A.label(f"{name}_lnjoin")
        A("s_barrier")
        A("s_mov_b32 s51, s98"); pre_chunk(0, which=(3,), src=False)
        A("s_mov_b32 s51, s99"); pre_chunk(1, which=(3,), src=False)
        A("s_waitcnt vmcnt(1)")
        A("s_barrier")
    stamp(2)
    def rd_ops(m):
        ks, tp = divmod(m % 10, 5)
        buf = WF + 4 * (m % 10)
        return [f"ds_read_b64_tr_b16 {v(buf+2*j,2)}, v{RD} offset:{(16*ks+4*j)*320 + tp*32}" for j in range(2)]
    for m in range(Dahead):
        for o in rd_ops(m): A(o)
    A(f"ds_read_b128 {v(XC,4)}, v{XRD}\nds_read_b128 {v(XC+4,4)}, v{XRD} offset:1024")
    for c in range(2, NPRE): pre_chunk(c)
    A("s_mov_b32 s50, 0x40000000\ns_mov_b32 s51, 0x40000000")
    A("s_waitcnt lgkmcnt(0)")
    bar_gap = 10 - Dahead - 1
    fill = {g: [] for g in range(10)}
    fill[bar_gap] += [f"s_waitcnt vmcnt({4*(NPRE-2)})", "s_barrier",
                      f"s_mov_b32 s{sWR}, s{sWRC}", f"s_mov_b32 s{sWRC}, s{sRD}",
                      f"s_add_u32 s{sRD}, s{sRD}, {SLOT}", f"s_cmp_ge_u32 s{sRD}, {NSLOT*SLOT}", f"s_cselect_b32 s{sRD}, 0, s{sRD}",
                      f"v_add_u32 v{RD}, s{sRD}, v{LP}", f"v_add_u32 v{XRD}, s{sRD}, v{XLP}"]
    so = src_ops()
    fill[bar_gap + 1] += so[:4]
    fill[bar_gap + 2] += so[4:] + [f"s_cmp_lt_u32 s{sC}, {20-NPRE}", "s_cselect_b32 s50, s50, 0x40000000", "s_cselect_b32 s51, s51, 0x40000000"]
    assert all(g > bar_gap + 2 or g < bar_gap for g in dma_gaps)
    for j in range(4):
        if exp & 1: continue
        m0, ld = dma_i(j, f"s{sWR}")
        if j == 3 and fuse: ld = ld.replace(" lds", " sc1 lds")
        fill[dma_gaps[j]] = [("m0", m0), ("dma", ld)] + fill[dma_gaps[j]]
    fill[9] += [f"s_add_u32 s{sC}, s{sC}, 1", f"s_cmp_lt_u32 s{sC}, 20", f"s_cbranch_scc1 {name}_loop"]
    xrd = {4: f"ds_read_b128 {v(XC,4)}, v{XRD}", 9: f"ds_read_b128 {v(XC+4,4)}, v{XRD} offset:1024"}
    assert bar_gap < 4
    stream = []
    for m in range(10):
        ks, tp = divmod(m, 5)
        stream.append(("mfma", m, f"v_mfma_f32_32x32x16_bf16 {a(16*tp,16)}, {v(WF+4*m,4)}, {v(XC+4*ks,4)}, {a(16*tp,16)}"))
        m0s = [o for o in fill[m] if isinstance(o, tuple) and o[0] == "m0"]
        if m0s: stream.append(("other", None, m0s[0][1]))
        for o in rd_ops(m + Dahead): stream.append(("lds", ("w", (m + Dahead) % 10), o))
        if m in xrd: stream.append(("lds", ("x", 0 if m == 4 else 1), xrd[m]))
        seen = 0
        for o in fill[m]:
            if isinstance(o, tuple):
                if o[0] == "m0":
                    seen += 1
                    if seen == 1: continue
                    stream.append(("other", None, o[1])); stream.append(("other", None, "s_nop 0"))
                else: stream.append(("other", None, o[1]))
            elif exp & 2 and o == "s_barrier": continue
            else: stream.append(("other", None, o))
    A(".p2align 6")
    A.label(f"{name}_loop")
    L = len(stream); full = stream + stream
    def need_n(pos, tag):
        p = max(q for q in range(pos) if full[q][0] == "lds" and full[q][1] == tag)
        return sum(1 for q in range(p + 1, pos) if full[q][0] == "lds")
    for q, (kind, tag, txt) in enumerate(stream):
        if kind == "mfma" and tag % wait_every == 0:
            ns = []
            for mm in range(tag, min(tag + wait_every, 10)): ns += [need_n(L + q, ("w", mm)), need_n(L + q, ("x", mm // 5))]
            A(f"s_waitcnt lgkmcnt({min(min(ns), 15)})")
        A(txt)
    A("s_waitcnt lgkmcnt(0)")
    stamp(3)
    A(f"s_cmp_lt_u32 s{sNB}, 6")
    A(f"s_cbranch_scc0 {name}_epi_h")
    VA = 24
    A(f"s_and_b32 s50, s{sNB}, 1\ns_lshl_b32 s50, s50, 4\ns_lshl_b32 s51, s{sPH}, 2\ns_add_u32 s65, s50, s51")
    A(f"v_mov_b32 v{MF}, 1.0")
    A(f"s_cmp_lt_u32 s{sNB}, 4")
    A(f"s_cbranch_scc0 {name}_epi_v")
    A(f"s_cmp_lt_u32 s{sNB}, 2")
    A(f"s_cbranch_scc0 {name}_epi_k")
    A(f"s_mov_b32 s{sHS}, {Q_HEAD}")
    A(f"s_lshr_b32 s51, s{sROW0}, 5\ns_mul_i32 s51, s51, {QK_TILE}\ns_add_u32 s50, s51, {WS_Q}")
    A(f"v_mov_b32 v{MF}, {hex(f32bits((20 ** -0.5) * 1.4426950408889634))}")
    A(f"s_branch {name}_epi_qk")
    A.label(f"{name}_epi_k")
    A(f"s_mov_b32 s{sHS}, {KV_HEAD}")
    A(f"s_lshr_b32 s51, s{sROW0}, 8\ns_mul_i32 s51, s51, {KV_CHUNK}\ns_add_u32 s50, s51, {WS_KV}")
    A(f"s_lshr_b32 s51, s{sROW0}, 5\ns_and_b32 s51, s51, 7\ns_mul_i32 s51, s51, {QK_TILE}\ns_add_u32 s50, s50, s51")
    A.label(f"{name}_epi_qk")
    A(f"s_mul_i32 s51, s65, s{sHS}\ns_add_u32 s50, s50, s51")
    A("v_lshlrev_b32 v2, 4, v6\nv_add_u32 v2, s50, v2")
    A("v_lshlrev_b32 v3, 3, v6\nv_add_u32 v3, s50, v3\nv_add_u32 v3, 1024, v3")
    A(f"v_add_u32 v8, s{sHS}, v2")
    offs = [("v2", 0), ("v2", 8), ("v2", 512), ("v2", 520), ("v3", 0), ("v8", 0)]
    for dq in range(5):
        (b0, c0), (b1, c1_) = offs[dq], offs[dq + 1]
        A(f"v_add_u32 v4, {c0}, {b0}\nv_add_u32 v5, {c1_}, {b1}")
        A(f"v_cndmask_b32 v{VA+dq}, v4, v5, s[{sHFM}:{sHFM+1}]")
    A(f"s_branch {name}_epi_qkv")
    A.label(f"{name}_epi_v")
    A(f"s_mov_b32 s{sHS}, {KV_HEAD}")
    A(f"s_lshr_b32 s51, s{sROW0}, 8\ns_mul_i32 s51, s51, {KV_CHUNK}\ns_add_u32 s50, s51, {WS_KV + KV_VOFF}")
    A(f"s_lshr_b32 s51, s{sROW0}, 5\ns_and_b32 s51, s51, 7\ns_mul_i32 s51, s51, {V_TILE}\ns_add_u32 s50, s50, s51")
    A(f"s_mul_i32 s51, s65, s{sHS}\ns_add_u32 s50, s50, s51")
    A("v_lshlrev_b32 v2, 3, v6\nv_add_u32 v2, s50, v2")
    for dq in range(5):
        c0, c1_ = dq * V_PLANE, ((dq + 1) * V_PLANE if dq < 4 else KV_HEAD)
        A(f"v_add_u32 v4, {c0}, v2\nv_add_u32 v5, {c1_}, v2")
        A(f"v_cndmask_b32 v{VA+dq}, v4, v5, s[{sHFM}:{sHFM+1}]")
    A(f"s_mov_b32 s51, {8*KV_HEAD}\nv_mul_lo_u32 v3, v7, s51\nv_add_u32 v3, v3, v2")
    A("v_mov_b32 v4, 0x3f80\nv_mov_b32 v5, 0\nv_mov_b32 v8, 0\nv_mov_b32 v9, 0")
    A(f"v_lshrrev_b32 v10, 2, v6\nv_mul_u32_u24 v10, {V_PLANE}, v10\nv_and_b32 v11, 3, v6\nv_lshl_add_u32 v10, v11, 3, v10\nv_add_u32 v10, 256, v10")
    A(f"v_lshlrev_b32 v11, 3, v6\nv_add_u32 v11, {1728-192}, v11\nv_cmp_lt_u32 vcc, 23, v6\ns_nop 1\nv_cndmask_b32 v10, v10, v11, vcc")
    A("v_lshlrev_b32 v11, 3, v6\nv_sub_u32 v11, v3, v11\nv_add_u32 v10, v10, v11")
    A(f"s_mov_b32 s{sHO}, 0")
    for i in range(4):
        A(f"buffer_store_dwordx2 v[8:9], v10, s[{sWS}:{sWS+3}], s{sHO} offen")
        A(f"buffer_store_dwordx2 v[4:5], v3, s[{sWS}:{sWS+3}], s{sHO} offen offset:{5*V_PLANE}")
        if i < 3: A(f"s_add_u32 s{sHO}, s{sHO}, s{sHS}")
    A.label(f"{name}_epi_qkv")
    A(f"v_mov_b32 v{MF+1}, v{MF}")
    A(f"s_lshl_b32 s61, s{sHS}, 3")
    q = 0
    for p in range(2):
        cur = 0
        A(f"s_mov_b32 s{sHO}, 0" if p == 0 else f"s_mov_b32 s{sHO}, s61")
        for tp in range(5):
            for a2 in range(2):
                g0 = 4 * tp + 2 * a2
                hh, dq0 = g0 // 5, g0 % 5
                while cur < hh:
                    A(f"s_add_u32 s{sHO}, s{sHO}, s{sHS}"); cur += 1
                E = 32 + 8 * (q % 4); q += 1
                base = tp * 16 + 8 * p + 4 * a2
                for i in range(4): A(f"v_accvgpr_read_b32 v{E+i}, a{base+i}")
                A(f"v_pk_mul_f32 {v(E,2)}, {v(E,2)}, {v(MF,2)}\nv_pk_mul_f32 {v(E+2,2)}, {v(E+2,2)}, {v(MF,2)}")
                A(f"v_cvt_pk_bf16_f32 v{E+4}, v{E}, v{E+1}\nv_cvt_pk_bf16_f32 v{E+5}, v{E+2}, v{E+3}")
                A(f"buffer_store_dwordx2 {v(E+4,2)}, v{VA+dq0}, s[{sWS}:{sWS+3}], s{sHO} offen")
    A(f"s_branch {name}_end")
    A.label(f"{name}_epi_h")
    A(f"s_lshr_b32 s50, s{sROW0}, 5\ns_mul_i32 s50, s50, 98304\ns_add_u32 s50, s50, {WS_H}")
    A(f"s_sub_u32 s51, s{sNB}, 6\ns_mul_i32 s51, s51, 10240\ns_add_u32 s50, s50, s51")
    A(f"s_mul_i32 s51, s{sPH}, 5120\ns_add_u32 s50, s50, s51")
    A("v_lshlrev_b32 v2, 4, v6\nv_lshl_add_u32 v2, v7, 3, v2")
    A(f"s_cmp_eq_u32 s{sNB}, 15\ns_cselect_b32 s61, s{sPH}, 0")
    q = 0
    for tp in range(5):
        if tp == 1:
            A(f"s_cmp_eq_u32 s61, 1\ns_cbranch_scc1 {name}_end")
        for a2 in range(2):
            E = 32 + 12 * (q % 2); q += 1
            bg, bu = tp * 16 + 4 * a2, tp * 16 + 8 + 4 * a2
            for i in range(4): A(f"v_accvgpr_read_b32 v{E+i}, a{bg+i}")
            for i in range(4): A(f"v_accvgpr_read_b32 v{E+4+i}, a{bu+i}")
            for i in range(4): A(f"v_max_f32 v{E+i}, 0, v{E+i}")
            A(f"v_pk_mul_f32 {v(E,2)}, {v(E,2)}, {v(E+4,2)}\nv_pk_mul_f32 {v(E+2,2)}, {v(E+2,2)}, {v(E+6,2)}")
            A(f"v_cvt_pk_bf16_f32 v{E+8}, v{E}, v{E+1}\nv_cvt_pk_bf16_f32 v{E+9}, v{E+2}, v{E+3}")
            A(f"buffer_store_dwordx2 {v(E+8,2)}, v2, s[{sWS}:{sWS+3}], s50 offen offset:{(tp%4)*1024 + a2*512}")
        if tp == 3: A("s_add_u32 s50, s50, 4096")
    A.label(f"{name}_end")
    rt_end(A, rt, 0, sWS, name)
    stamp_dump(A, stamps, 4, sWS, 8, name)
    A("s_waitcnt vmcnt(0)")
    A("s_endpgm")
    return A.text(), kernel_desc(name, *((88 + 80, 88) if not fuse else (248, 168)))
```

```python
from common import *
import struct
def f32bits(x): return struct.unpack("<I", struct.pack("<f", x))[0]

KVSLOT = KV_CHUNK
GW_BASE = 3 * KVSLOT
GW_STAGE = 5120
GW_WAVE = 4 * GW_STAGE
K2_LDS = GW_BASE + 4 * GW_WAVE
RED_BASE = GW_BASE

def gemm_lane_setup(A, LANE, sLDWrow, VD, VRD):
    A("s_movk_i32 s60, 3277")
    A("s_movk_i32 s61, 1280")
    for i in range(5):
        A(f"v_add_u32 v5, {i*64}, v{LANE}")
        A("v_mul_lo_u32 v6, v5, s60")
        A("v_lshrrev_b32 v6, 16, v6")
        A("v_mul_u32_u24 v7, 20, v6")
        A("v_sub_u32 v7, v5, v7")
        A("v_mul_lo_u32 v6, v6, s61")
        A(f"v_lshl_add_u32 v{VD+i}, v7, 4, v6")
    A(f"v_and_b32 v5, 15, v{LANE}")
    A(f"v_lshrrev_b32 v6, 5, v{LANE}")
    A("v_lshrrev_b32 v7, 2, v5")
    A("v_lshl_add_u32 v7, v6, 3, v7")
    A(f"v_mul_u32_u24 v{VRD}, 320, v7")
    A("v_and_b32 v7, 3, v5")
    A(f"v_lshl_add_u32 v{VRD}, v7, 3, v{VRD}")
    A(f"v_bfe_u32 v7, v{LANE}, 4, 1")
    A(f"v_lshl_add_u32 v{VRD}, v7, 5, v{VRD}")

def gen_k2(name="k2_kernel", rt=False, stamps=False, force_fallback=False, no_gemm=False, abl=0, prio=0, fuse=1, gstamps=0, sleep0=16, sleep1=8):
    A = Asm()
    A.raw(kernel_header(name))
    LANE = 1
    sWS, sX, sWD = 24, 28, 32
    sWAVE, sHEAD, sQB, sT, sNQ = 40, 41, 42, 43, 44
    def stamp(i):
        if not stamps: return
        A(f"s_memtime s[70:71]")
        A("s_waitcnt lgkmcnt(0)")
        A(f"s_mov_b32 s{72+i}, s70")
    def stamp_out(n, lab):
        if not stamps: return
        A("s_waitcnt vmcnt(0)")
        stamp(n)
        A(f"s_mul_i32 s50, s2, 12\ns_add_u32 s50, s50, s{sWAVE}\ns_lshl_b32 s50, s50, 6\ns_add_u32 s50, s50, {WS_END}")
        A("v_mov_b32 v2, 0")
        for i in range(n + 1):
            A(f"v_mov_b32 v3, s{72+i}")
            A(f"buffer_store_dword v3, v2, s[{sWS}:{sWS+3}], s50 offen offset:{4*i}")
    A("s_cmp_ge_u32 s2, 256")
    A(f"s_cbranch_scc1 {name}_end")
    rt_begin(A, rt)
    stamp(0)
    A("s_load_dwordx2 s[4:5], s[0:1], 0")
    A("s_load_dwordx2 s[6:7], s[0:1], 48")
    A("s_load_dwordx2 s[8:9], s[0:1], 72")
    A("s_load_dwordx2 s[10:11], s[0:1], 16")
    A("s_load_dwordx4 s[12:15], s[0:1], 56")
    A(f"v_and_b32 v{LANE}, 63, v0")
    A("v_lshrrev_b32 v2, 6, v0")
    A("s_and_b32 s50, s2, 7\ns_lshr_b32 s51, s2, 3")
    A(f"v_readfirstlane_b32 s{sWAVE}, v2")
    A(f"s_and_b32 s{sHEAD}, s51, 3\ns_lshl_b32 s52, s50, 2\ns_add_u32 s{sHEAD}, s{sHEAD}, s52")
    A(f"s_lshr_b32 s{sQB}, s51, 2")
    A(f"s_and_b32 s{sT}, s51, 7\ns_lshl_b32 s52, s50, 3\ns_add_u32 s{sT}, s{sT}, s52")
    A(f"s_lshr_b32 s{sNQ}, s51, 3")
    A("s_waitcnt lgkmcnt(0)")
    srd(A, sWS, 8, 9, WS_SIZE)
    A(f"s_cmp_ge_u32 s{sWAVE}, 8")
    A(f"s_cbranch_scc1 {name}_gemm")
    Q1, Q2, Q1B, Q2B, K1, K2, VLO, VHI = 8, 12, 16, 20, 24, 28, 32, 36
    P, PB, O, OB, S0, S1 = 40, 48, 56, 72, 88, 104
    aK1, aK2, aVLO, aVHI = 120, 121, 122, 123
    lK1, lK2, lV = 124, 125, 126
    TQ, HF, TMP = 127, 128, 129
    sSLOT, sC, sHFM, sQT, sKH, sQG = 45, 46, 48, 47, 55, 56
    A(f"v_and_b32 v{TQ}, 31, v{LANE}")
    A(f"v_lshrrev_b32 v{HF}, 5, v{LANE}")
    A(f"v_cmp_lt_u32 s[{sHFM}:{sHFM+1}], 31, v{LANE}")
    A(f"s_and_b32 s{sQG}, s{sWAVE}, 3\ns_lshr_b32 s{sKH}, s{sWAVE}, 2")
    A(f"s_lshl_b32 s{sQT}, s{sQB}, 3\ns_lshl_b32 s50, s{sQG}, 1\ns_add_u32 s{sQT}, s{sQT}, s50")
    A(f"s_xor_b32 s52, s{sKH}, 1\ns_add_u32 s52, s52, s{sQT}\ns_add_u32 s{sQT}, s{sQT}, s{sKH}")
    A(f"v_lshlrev_b32 v{lK1}, 4, v{TQ}\nv_lshl_add_u32 v{lK1}, v{HF}, 9, v{lK1}")
    A(f"v_lshlrev_b32 v{lK2}, 3, v{TQ}\nv_add_u32 v{lK2}, 1024, v{lK2}")
    A(f"s_mul_i32 s50, s{sHEAD}, {Q_HEAD}\ns_add_u32 s50, s50, {WS_Q}")
    A(f"s_mul_i32 s51, s{sQT}, {QK_TILE}\ns_add_u32 s51, s51, s50\ns_mul_i32 s52, s52, {QK_TILE}\ns_add_u32 s52, s52, s50")
    A(f"buffer_load_dwordx4 {v(Q1,4)}, v{lK1}, s[{sWS}:{sWS+3}], s51 offen")
    A(f"buffer_load_dwordx2 {v(Q2,2)}, v{lK2}, s[{sWS}:{sWS+3}], s51 offen")
    A(f"buffer_load_dwordx4 {v(Q1B,4)}, v{lK1}, s[{sWS}:{sWS+3}], s52 offen")
    A(f"buffer_load_dwordx2 {v(Q2B,2)}, v{lK2}, s[{sWS}:{sWS+3}], s52 offen")
    A(f"s_mul_i32 s53, s{sHEAD}, {KV_HEAD}\ns_add_u32 s53, s53, {WS_KV}")
    A(f"buffer_load_dwordx4 {v(K1,4)}, v{lK1}, s[{sWS}:{sWS+3}], s53 offen")
    A(f"buffer_load_dwordx2 {v(K2,2)}, v{lK2}, s[{sWS}:{sWS+3}], s53 offen")
    A(f"v_and_b32 v2, 15, v{LANE}\nv_and_b32 v3, 3, v2\nv_lshrrev_b32 v2, 2, v2")
    A(f"v_bfe_u32 v4, v{LANE}, 4, 1")
    A("v_lshl_add_u32 v3, v4, 2, v3\nv_min_u32 v3, 5, v3")
    A(f"v_mul_u32_u24 v{lV}, {V_PLANE}, v3")
    A(f"v_lshl_add_u32 v2, v{HF}, 2, v2")
    A(f"v_lshl_add_u32 v{lV}, v2, 3, v{lV}")
    A(f"v_add_u32 v{lV}, {KV_VOFF}, v{lV}")
    LK1, LK2, LV = TMP + 5, TMP + 6, TMP + 7
    A(f"s_mul_i32 s50, s{sKH}, {QK_TILE}\ns_mul_i32 s51, s{sKH}, {V_TILE}")
    A(f"v_add_u32 v{LK1}, s50, v{lK1}\nv_add_u32 v{LK2}, s50, v{lK2}\nv_add_u32 v{LV}, s51, v{lV}")
    A(f"v_mov_b32 v{aK1}, v{LK1}\nv_mov_b32 v{aK2}, v{LK2}\nv_mov_b32 v{aVLO}, v{LV}\nv_mov_b32 v{aVHI}, v{LV}")
    A(f"v_mov_b32 v{K2+2}, 0x3f80\nv_mov_b32 v{K2+3}, 0")
    for q2 in (Q2, Q2B): A(f"v_mov_b32 v{q2+2}, 0\nv_mov_b32 v{q2+3}, 0")
    for i in range(32): A(f"v_mov_b32 v{O+i}, 0")
    for i in range(4): A(f"v_mov_b32 v{VHI+i}, 0\nv_mov_b32 v{PB+4+i}, 0")
    A("s_waitcnt vmcnt(0)")
    for q2 in (Q2, Q2B):
        A(f"v_cndmask_b32 v{q2}, v{q2}, v{q2+3}, s[{sHFM}:{sHFM+1}]")
        A(f"v_cndmask_b32 v{q2+1}, v{q2+1}, v{q2+3}, s[{sHFM}:{sHFM+1}]")
    A("s_nop 1")
    M = lambda d, x, y, c: A(f"v_mfma_f32_32x32x16_bf16 {v(d,16)}, {v(x,4)}, {v(y,4)}, {c}")
    M(S0, K1, Q1, "0"); M(S1, K1, Q1B, "0"); M(S0, K2, Q2, v(S0,16)); M(S1, K2, Q2B, v(S1,16))
    A("s_nop 15\ns_nop 3")
    for (Sx, q2, tm) in ((S0, Q2, TMP), (S1, Q2B, TMP + 2)):
        A(f"v_max3_f32 v{tm}, v{Sx}, v{Sx+1}, v{Sx+2}")
        for i in range(3, 15, 2): A(f"v_max3_f32 v{tm}, v{tm}, v{Sx+i}, v{Sx+i+1}")
        A(f"v_max_f32 v{tm}, v{tm}, v{Sx+15}")
        A(f"v_mov_b32 v{tm+1}, v{tm}")
        A("s_nop 1")
        A(f"v_permlane32_swap_b32 v{tm}, v{tm+1}")
        A("s_nop 1")
        A(f"v_max_f32 v{tm}, v{tm}, v{tm+1}")
        A(f"v_sub_f32 v{tm}, 0, v{tm}")
        A(f"v_cvt_pk_bf16_f32 v{tm}, v{tm}, v{q2+3}")
        A(f"v_cndmask_b32 v{q2+2}, v{tm}, v{q2+3}, s[{sHFM}:{sHFM+1}]")
    if prio: A(f"s_setprio {prio}")
    A("s_barrier")
    stamp(1)
    def vrd(dst, areg, tile, m):
        return [f"ds_read_b64_tr_b16 {v(dst+2*j,2)}, v{areg} offset:{tile*V_TILE + (16*m+8*j)*8}" for j in range(2)]
    A(f"ds_read_b128 {v(K1,4)}, v{aK1}")
    A(f"ds_read_b64 {v(K2,2)}, v{aK2}")
    for o in vrd(VLO, aVLO, 0, 0): A(o)
    A(f"s_mov_b32 s{sSLOT}, {KVSLOT}")
    A(f"s_mov_b32 s{sC}, 0")
    A("s_waitcnt lgkmcnt(0)")
    M(S0, K1, Q1, "0"); M(S0, K2, Q2, v(S0,16))
    A("s_nop 15")
    A(".p2align 6")
    A.label(f"{name}_aloop")
    def expcvt(Sx, i0, p0, Px=None):
        Px = P if Px is None else Px
        for i in range(4): A(f"v_exp_f32 v{Sx+i0+i}, v{Sx+i0+i}")
        A(f"v_cvt_pk_bf16_f32 v{Px+p0}, v{Sx+i0}, v{Sx+i0+1}")
        A(f"v_cvt_pk_bf16_f32 v{Px+p0+1}, v{Sx+i0+2}, v{Sx+i0+3}")
    for i in range(4):
        nt_ = 2 * ((i + 1) % 4)
        if i == 3:
            if not abl & 2: A("s_barrier")
            A(f"v_add_u32 v{aK1}, s{sSLOT}, v{LK1}\nv_add_u32 v{aK2}, s{sSLOT}, v{LK2}\nv_add_u32 v{aVLO}, s{sSLOT}, v{LV}")
        M(S1, K1, Q1B, "0")
        A(f"ds_read_b128 {v(K1,4)}, v{aK1} offset:{nt_*QK_TILE}")
        expcvt(S0, 0, 0)
        M(OB, VHI, PB + 4, v(OB,16))
        for o in vrd(VHI, aVHI, 2 * i, 1): A(o)
        expcvt(S0, 4, 2)
        M(S1, K2, Q2B, v(S1,16))
        A(f"ds_read_b64 {v(K2,2)}, v{aK2} offset:{nt_*QK_TILE}")
        expcvt(S0, 8, 4)
        A("s_waitcnt lgkmcnt(4)")
        M(O, VLO, P, v(O,16))
        expcvt(S0, 12, 6)
        A("s_waitcnt lgkmcnt(3)")
        M(S0, K1, Q1, "0")
        expcvt(S1, 0, 0, PB)
        A("s_waitcnt lgkmcnt(1)")
        M(O, VHI, P + 4, v(O,16))
        expcvt(S1, 4, 2, PB)
        A("s_waitcnt lgkmcnt(0)")
        M(S0, K2, Q2, v(S0,16))
        expcvt(S1, 8, 4, PB)
        M(OB, VLO, PB, v(OB,16))
        for o in vrd(VLO, aVLO, nt_, 0): A(o)
        expcvt(S1, 12, 6, PB)
    A(f"v_add_u32 v{aVHI}, s{sSLOT}, v{LV}")
    A(f"s_add_u32 s{sSLOT}, s{sSLOT}, {KVSLOT}\ns_cmp_ge_u32 s{sSLOT}, {3*KVSLOT}\ns_cselect_b32 s{sSLOT}, 0, s{sSLOT}")
    A(f"s_add_u32 s{sC}, s{sC}, 1\ns_cmp_lt_u32 s{sC}, 8")
    A(f"s_cbranch_scc1 {name}_aloop")
    M(OB, VHI, PB + 4, v(OB,16))
    stamp(2)
    A(f"s_mul_i32 s50, s{sWAVE}, 3072\ns_xor_b32 s52, s{sWAVE}, 4\ns_mul_i32 s52, s52, 3072")
    A(f"v_lshlrev_b32 v2, 4, v{LANE}\nv_add_u32 v3, s52, v2\nv_add_u32 v2, s50, v2")
    A("s_waitcnt lgkmcnt(0)")
    A("s_nop 7")
    for q in range(3): A(f"ds_write_b128 v2, {v(OB+4*q,4)} offset:{q*1024}")
    A("s_waitcnt lgkmcnt(0)")
    A("s_barrier")
    for q in range(3): A(f"ds_read_b128 {v(OB+4*q,4)}, v3 offset:{q*1024}")
    A("s_waitcnt lgkmcnt(0)")
    for i in range(12): A(f"v_add_f32 v{O+i}, v{O+i}, v{OB+i}")
    A(f"v_mov_b32 v{TMP}, v{O+8}\nv_mov_b32 v{O+12}, v{O+8}")
    A("s_nop 1")
    A(f"v_permlane32_swap_b32 v{TMP}, v{O+12}")
    A("s_nop 1")
    A(f"v_cndmask_b32 v{TMP}, v{O+12}, v{O+8}, s[{sHFM}:{sHFM+1}]")
    A(f"v_cmp_le_f32 vcc, {hex(f32bits(2.0**-60))}, v{TMP}")
    A(f"v_cmp_ge_f32 s[50:51], {hex(0)}, v{TMP}" if False else f"s_mov_b32 s52, {hex(f32bits(2.0**60))}")
    A(f"v_cmp_ge_f32 s[50:51], s52, v{TMP}")
    A("s_nop 1")
    A("s_and_b64 vcc, vcc, s[50:51]")
    A("s_cmp_eq_u64 vcc, exec")
    if force_fallback: A("s_cmp_eq_u32 s2, 0x7fffffff")
    A(f"s_cbranch_scc0 {name}_fallback")
    A.label(f"{name}_aepi")
    A(f"v_rcp_f32 v{TMP}, v{TMP}")
    A(f"s_mul_i32 s50, s{sQT}, 40960\ns_add_u32 s50, s50, {WS_O}")
    A(f"s_mul_i32 s51, s{sHEAD}, 20")
    A(f"v_lshl_add_u32 v2, v{HF}, 2, s51")
    for qd in range(3):
        if qd == 1: A("v_add_u32 v2, 8, v2")
        if qd == 2: A("v_add_u32 v2, 8, v2")
        A("v_lshrrev_b32 v3, 3, v2\nv_lshlrev_b32 v3, 9, v3")
        A("v_and_b32 v4, 4, v2\nv_lshl_add_u32 v3, v4, 1, v3")
        A(f"v_lshl_add_u32 v3, v{TQ}, 4, v3")
        for i in range(4): A(f"v_mul_f32 v{O+4*qd+i}, v{O+4*qd+i}, v{TMP}")
        A(f"v_cvt_pk_bf16_f32 v{P+2*qd}, v{O+4*qd}, v{O+4*qd+1}\nv_cvt_pk_bf16_f32 v{P+2*qd+1}, v{O+4*qd+2}, v{O+4*qd+3}")
        if qd == 2:
            A(f"s_andn2_b64 exec, exec, s[{sHFM}:{sHFM+1}]")
        A(f"buffer_store_dwordx2 {v(P+2*qd,2)}, v3, s[{sWS}:{sWS+3}], s50 offen" + (" sc1" if fuse else ""))
    A("s_mov_b64 exec, -1")
    if fuse:
        A("s_waitcnt vmcnt(0)")
        A("s_barrier")
    stamp_out(3, None)
    A(f"s_branch {name}_end")
    A.label(f"{name}_fallback")
    M, AL, VA0, VA1 = TMP + 1, TMP + 2, TMP + 3, TMP + 4
    A(f"v_mov_b32 v{Q2+2}, 0")
    for i in range(16): A(f"v_mov_b32 v{O+i}, 0")
    A(f"v_mov_b32 v{M}, 0xff7fffff")
    A(f"v_lshrrev_b32 v2, 2, v{TQ}\nv_min_u32 v2, 5, v2\nv_mul_u32_u24 v{VA0}, {V_PLANE}, v2")
    A(f"v_and_b32 v2, 3, v{TQ}\nv_lshl_add_u32 v{VA0}, v2, 1, v{VA0}\nv_lshl_add_u32 v{VA0}, v{HF}, 5, v{VA0}")
    A(f"v_add_u32 v{VA0}, {KV_VOFF}, v{VA0}")
    A(f"s_mul_i32 s53, s{sHEAD}, {KV_HEAD}\ns_add_u32 s53, s53, {WS_KV}")
    A("s_mov_b32 s54, 0")
    A.label(f"{name}_floop")
    A(f"s_lshr_b32 s50, s54, 3\ns_mul_i32 s50, s50, {KV_CHUNK}\ns_add_u32 s50, s50, s53\ns_and_b32 s51, s54, 7")
    A(f"s_mul_i32 s52, s51, {V_TILE}\ns_add_u32 s52, s52, s50")
    A(f"s_mul_i32 s51, s51, {QK_TILE}\ns_add_u32 s50, s50, s51")
    A(f"buffer_load_dwordx4 {v(K1,4)}, v{lK1}, s[{sWS}:{sWS+3}], s50 offen")
    A(f"buffer_load_dwordx2 {v(K2,2)}, v{lK2}, s[{sWS}:{sWS+3}], s50 offen")
    for m in range(2):
        for e in range(8):
            A(f"buffer_load_ushort v{S1+8*m+e}, v{VA0}, s[{sWS}:{sWS+3}], s52 offen offset:{(16*m + 8*(e>>2) + (e&3))*8}")
    A("s_waitcnt vmcnt(16)")
    A(f"v_mfma_f32_32x32x16_bf16 {v(S0,16)}, {v(K1,4)}, {v(Q1,4)}, 0")
    A(f"v_mfma_f32_32x32x16_bf16 {v(S0,16)}, {v(K2,4)}, {v(Q2,4)}, {v(S0,16)}")
    A("s_nop 15\ns_nop 3")
    A(f"v_max3_f32 v{AL}, v{S0}, v{S0+1}, v{M}")
    for i in range(2, 16, 2): A(f"v_max3_f32 v{AL}, v{AL}, v{S0+i}, v{S0+i+1}")
    A(f"v_mov_b32 v{VA1}, v{AL}")
    A("s_nop 1")
    A(f"v_permlane32_swap_b32 v{AL}, v{VA1}")
    A("s_nop 1")
    A(f"v_max_f32 v{VA1}, v{AL}, v{VA1}")
    A(f"v_sub_f32 v{AL}, v{M}, v{VA1}")
    A(f"v_exp_f32 v{AL}, v{AL}")
    A(f"v_mov_b32 v{M}, v{VA1}")
    for i in range(16): A(f"v_sub_f32 v{S0+i}, v{S0+i}, v{M}")
    for i in range(16): A(f"v_mul_f32 v{O+i}, v{O+i}, v{AL}")
    for g in range(4): expcvt(S0, 4 * g, 2 * g)
    A("s_waitcnt vmcnt(0)")
    for m in range(2):
        for e in range(4):
            A(f"v_lshl_or_b32 v{(VLO if m == 0 else VHI)+e}, v{S1+8*m+2*e+1}, 16, v{S1+8*m+2*e}")
    A("s_nop 1")
    A(f"v_mfma_f32_32x32x16_bf16 {v(O,16)}, {v(VLO,4)}, {v(P,4)}, {v(O,16)}")
    A(f"v_mfma_f32_32x32x16_bf16 {v(O,16)}, {v(VHI,4)}, {v(P+4,4)}, {v(O,16)}")
    A("s_nop 15\ns_nop 3")
    A("s_add_u32 s54, s54, 1\ns_cmp_lt_u32 s54, 64")
    A(f"s_cbranch_scc1 {name}_floop")
    A(f"v_cndmask_b32 v{TMP}, v{O+12}, v{O+8}, s[{sHFM}:{sHFM+1}]")
    A(f"s_branch {name}_aepi")
    A.label(f"{name}_gemm")
    gst = mk_stamp(A, gstamps)
    gst(0)
    ACC, WFR, HFR = 8, 88, 108
    VD, VRD, VL16, VX, XR, VRD2 = 148, 153, 154, 155, 156, 166
    OFR = 108
    sG, sKV, sKVL, sWO, sHO2, sLB, sI, sSL = 45, 46, 47, 48, 49, 52, 53, 54
    srd(A, sX, 4, 5, S * D * 2)
    srd(A, sWD, 6, 7, F * D * 2)
    A(f"s_sub_u32 s{sG}, s{sWAVE}, 8")
    A(f"v_lshlrev_b32 v{VL16}, 4, v{LANE}")
    A(f"s_mul_i32 s{sKV}, s{sHEAD}, {KV_HEAD}\ns_add_u32 s{sKV}, s{sKV}, {WS_KV}\ns_mul_i32 s{sKVL}, s{sG}, 6144\ns_add_u32 s{sKV}, s{sKV}, s{sKVL}")
    def kv_dma(slot_sreg):
        for i in range(6):
            if i % 4 == 0:
                A(f"s_add_u32 m0, s{slot_sreg}, {(i//4)*4096}" if i else f"s_mov_b32 m0, s{slot_sreg}")
                A(f"s_add_u32 s50, s{sKV}, {(i//4)*4096}")
            A(f"buffer_load_dwordx4 v{VL16}, s[{sWS}:{sWS+3}], s50 offen offset:{(i%4)*1024} lds")
        A(f"s_add_u32 s{sKV}, s{sKV}, {KV_CHUNK}")
    A(f"s_mov_b32 s{sSL}, s{sKVL}")
    kv_dma(sSL)
    gemm_lane_setup(A, LANE, None, VD, VRD)
    A(f"s_mul_i32 s{sLB}, s{sG}, {GW_WAVE}\ns_add_u32 s{sLB}, s{sLB}, {GW_BASE}")
    A(f"v_add_u32 v{VRD}, s{sLB}, v{VRD}")
    A(f"s_mul_i32 s{sWO}, s{sG}, {24*20480}\ns_mul_i32 s50, s{sNQ}, 320\ns_add_u32 s{sWO}, s{sWO}, s50")
    A(f"s_mul_i32 s{sHO2}, s{sT}, 96\ns_mul_i32 s50, s{sG}, 24\ns_add_u32 s{sHO2}, s{sHO2}, s50\ns_lshl_b32 s{sHO2}, s{sHO2}, 10\ns_add_u32 s{sHO2}, s{sHO2}, {WS_H}")
    def issue_stage(st, sw, sh):
        for i in range(5):
            A(f"s_add_u32 m0, s{sLB}, {st*GW_STAGE + i*1024}")
            A("s_nop 0")
            A(f"buffer_load_dwordx4 v{VD+i}, s[{sWD}:{sWD+3}], s{sw} offen lds")
        A(f"buffer_load_dwordx4 {v(HFR+4*st,4)}, v{VL16}, s[{sWS}:{sWS+3}], s{sh} offen")
        A(f"s_add_u32 s{sWO}, s{sWO}, 20480\ns_add_u32 s{sHO2}, s{sHO2}, 1024")
    for i in range(80): A(f"v_mov_b32 v{ACC+i}, 0")
    A(f"s_mov_b32 s{sI}, 0")
    A(f"s_add_u32 s{sSL}, s{sKVL}, {KVSLOT}")
    A("s_waitcnt vmcnt(0)")
    A("s_barrier")
    for st in range(3): issue_stage(st, sWO, sHO2)
    A(".p2align 6")
    A.label(f"{name}_gloop")
    kv_dma(sSL)
    A(f"s_add_u32 s{sSL}, s{sSL}, {KVSLOT}\ns_cmp_ge_u32 s{sSL}, {3*KVSLOT}\ns_cselect_b32 s50, {3*KVSLOT}, 0\ns_sub_u32 s{sSL}, s{sSL}, s50")
    for k4 in range(4):
        if abl & 1: continue
        A(f"s_waitcnt vmcnt({18 if k4 < 3 else 12})")
        for t in range(5):
            for j in range(2):
                A(f"ds_read_b64_tr_b16 {v(WFR+4*t+2*j,2)}, v{VRD} offset:{k4*GW_STAGE + j*1280 + t*64}")
        if k4 >= 1:
            A(f"s_cmp_lt_u32 s{sI}, 5\ns_cselect_b32 s50, s{sWO}, 0x40000000\ns_cselect_b32 s51, s{sHO2}, 0x40000000")
            issue_stage((k4 + 3) % 4, 50, 51)
        else:
            issue_stage((k4 + 3) % 4, sWO, sHO2)
        for t in range(5):
            A(f"s_waitcnt lgkmcnt({8-2*t})")
            if not no_gemm:
                A(f"v_mfma_f32_32x32x16_bf16 {v(ACC+16*t,16)}, {v(WFR+4*t,4)}, {v(HFR+4*k4,4)}, {v(ACC+16*t,16)}")
    A("s_waitcnt vmcnt(24)" if not abl & 1 else "s_waitcnt vmcnt(0)")
    A(f"s_cmp_eq_u32 s{sI}, 5\ns_cbranch_scc0 {name}_gnw")
    A("s_waitcnt vmcnt(0)")
    A.label(f"{name}_gnw")
    if not abl & 2: A("s_barrier")
    A(f"s_add_u32 s{sI}, s{sI}, 1\ns_cmp_lt_u32 s{sI}, 6")
    A(f"s_cbranch_scc1 {name}_gloop")
    kv_dma(sSL)
    A(f"v_and_b32 v2, 31, v{LANE}\nv_lshrrev_b32 v3, 5, v{LANE}")
    A(f"s_lshl_b32 s50, s{sT}, 5\nv_add_u32 v2, s50, v2\ns_movk_i32 s50, 1280\nv_mul_lo_u32 v{VX}, v2, s50")
    A(f"v_lshl_add_u32 v{VX}, v3, 3, v{VX}")
    A(f"s_mul_i32 s50, s{sNQ}, 320\ns_lshl_b32 s51, s{sG}, 4\ns_add_u32 s50, s50, s51")
    for t in range(5):
        A(f"buffer_load_dwordx2 {v(XR+2*t,2)}, v{VX}, s[{sX}:{sX+3}], s50 offen offset:{t*64}")
    def red_write():
        for aq in range(4):
            A(f"s_cmp_eq_u32 s{sG}, {aq}")
            A(f"s_cbranch_scc1 {name}_rw{aq}")
            A(f"s_sub_u32 s50, s{sG}, {aq+1}\ns_and_b32 s50, s50, 3\ns_mul_i32 s50, s50, 5120\ns_add_u32 s50, s50, {RED_BASE + aq*15360}")
            A(f"v_add_u32 v2, s50, v{VL16}")
            for t in range(5):
                A(f"ds_write_b128 v2, {v(ACC+16*t+4*aq,4)} offset:{t*1024}")
            A.label(f"{name}_rw{aq}")
        for aq in range(4):
            A(f"s_cmp_eq_u32 s{sG}, {aq}")
            A(f"s_cbranch_scc0 {name}_rm{aq}")
            for t in range(5):
                for i in range(4): A(f"v_mov_b32 v{WFR+4*t+i}, v{ACC+16*t+4*aq+i}")
            A.label(f"{name}_rm{aq}")
    def red_read():
        A(f"s_mul_i32 s50, s{sG}, 15360\ns_add_u32 s50, s50, {RED_BASE}\nv_add_u32 v2, s50, v{VL16}")
        for sl in range(3):
            for t in range(5):
                A(f"ds_read_b128 {v(ACC+20*sl+4*t,4)}, v2 offset:{sl*5120+t*1024}")
    def red_add():
        for t in range(5):
            for hlf in range(2):
                A(f"v_lshlrev_b32 v3, 16, v{XR+2*t+hlf}\nv_and_b32 v4, 0xffff0000, v{XR+2*t+hlf}")
                A(f"v_add_f32 v{WFR+4*t+2*hlf}, v{WFR+4*t+2*hlf}, v3\nv_add_f32 v{WFR+4*t+2*hlf+1}, v{WFR+4*t+2*hlf+1}, v4")
        for sl in range(3):
            A(f"s_waitcnt lgkmcnt({10-5*sl})")
            for i in range(20): A(f"v_add_f32 v{WFR+i}, v{WFR+i}, v{ACC+20*sl+i}")
    if not fuse:
        red_write()
        A("s_waitcnt vmcnt(5) lgkmcnt(0)")
        if not abl & 2: A("s_barrier")
        red_read()
        A("s_waitcnt vmcnt(0) lgkmcnt(0)")
        if not abl & 2: A("s_barrier")
        red_add()
        A(f"s_mul_i32 s50, s{sT}, 20\ns_mul_i32 s51, s{sNQ}, 5\ns_add_u32 s50, s50, s51\ns_lshl_b32 s50, s50, 2\ns_add_u32 s50, s50, s{sG}\ns_lshl_b32 s50, s50, 10\ns_add_u32 s50, s50, {WS_Y}")
        for t in range(5):
            A(f"buffer_store_dwordx4 {v(WFR+4*t,4)}, v{VL16}, s[{sWS}:{sWS+3}], s50 offen")
            if t < 4: A("s_add_u32 s50, s50, 4096")
        A("s_barrier")
    else:
        sWOs, sOUT, sDBG = 36, 56, 60
        srd(A, sWOs, 10, 11, D * D * 2)
        srd(A, sOUT, 12, 13, S * D * 2)
        A(f"v_add_u32 v{VX}, s50, v{VX}")
        A(f"s_mul_i32 s{sWO}, s{sG}, {10*20480}\ns_mul_i32 s50, s{sNQ}, 320\ns_add_u32 s{sWO}, s{sWO}, s50")
        A(f"s_mul_i32 s55, s{sG}, {GW_STAGE}\ns_add_u32 s55, s55, {2*KVSLOT}")
        A(f"v_subrev_u32 v{VRD2}, s{sLB}, v{VRD}\nv_add_u32 v{VRD2}, s55, v{VRD2}")
        def st_of(k):
            if k == 4 or k == 9: return 55, VRD2, 0
            return sLB, VRD, (k if k < 4 else k - 5) * GW_STAGE
        def wo_stage(k):
            base, _, off = st_of(k)
            for i in range(5):
                A(f"s_add_u32 m0, s{base}, {off + i*1024}")
                A("s_nop 0")
                A(f"buffer_load_dwordx4 v{VD+i}, s[{sWOs}:{sWOs+3}], s{sWO} offen lds")
            A(f"s_add_u32 s{sWO}, s{sWO}, 20480")
        for k in range(4): wo_stage(k)
        A("s_waitcnt vmcnt(25)")
        A("s_barrier")
        wo_stage(4)
        A(f"s_lshl_b32 s51, s{sQB}, 10\ns_lshr_b32 s50, s{sHEAD}, 3\ns_lshl_b32 s50, s50, 8\ns_add_u32 s65, s51, s50\ns_add_u32 s65, s65, {WS_FLAG}")
        A(f"s_lshr_b32 s51, s{sT}, 3\ns_lshl_b32 s51, s51, 10\ns_lshl_b32 s50, s{sG}, 8\ns_add_u32 s51, s51, s50\ns_add_u32 s51, s51, {WS_FLAG}")
        A(f"s_mul_i32 s{sHO2}, s{sT}, 40\ns_mul_i32 s50, s{sG}, 10\ns_add_u32 s{sHO2}, s{sHO2}, s50\ns_lshl_b32 s{sHO2}, s{sHO2}, 10\ns_add_u32 s{sHO2}, s{sHO2}, {WS_O}")
        A("v_mov_b32 v2, 0\nv_mov_b32 v4, 1")
        A("s_mov_b32 s64, 0")
        A("s_barrier")
        A("s_barrier")
        gst(1)
        A("s_barrier")
        gst(2)
        A(f"s_cmp_eq_u32 s{sG}, 0")
        A(f"s_cbranch_scc0 {name}_nosig")
        A("s_mov_b64 exec, 1")
        A(f"buffer_atomic_add v4, v2, s[{sWS}:{sWS+3}], s65 offen sc1")
        A("s_mov_b64 exec, -1")
        A.label(f"{name}_nosig")
        gst(3)
        if sleep0: A(f"s_sleep {sleep0}")
        A("s_mov_b64 exec, 1")
        A.label(f"{name}_poll")
        A(f"buffer_load_dword v3, v2, s[{sWS}:{sWS+3}], s51 offen sc1")
        A("s_add_u32 s64, s64, 1")
        A("s_waitcnt vmcnt(0)")
        A("v_readfirstlane_b32 s50, v3")
        A("s_nop 3")
        A("s_cmp_ge_u32 s50, 8")
        A(f"s_cbranch_scc1 {name}_go")
        A(f"s_sleep {sleep1}")
        A("s_cmp_lt_u32 s64, 0x40000")
        A(f"s_cbranch_scc1 {name}_poll")
        A.label(f"{name}_go")
        A("s_mov_b64 exec, -1")
        gst(4)
        for k in range(10):
            A(f"buffer_load_dwordx4 {v(OFR+4*k,4)}, v{VL16}, s[{sWS}:{sWS+3}], s{sHO2} offen offset:{(k%4)*1024} sc1")
            if k % 4 == 3: A(f"s_add_u32 s{sHO2}, s{sHO2}, 4096")
        order = [("o", k) for k in range(10)]
        for k in range(10):
            need = [order.index(("o", k))] + ([order.index(("d", k))] if k >= 5 else [])
            n = sum(1 if o[0] == "o" else 5 for o in order[max(need) + 1:])
            _, rd, off = st_of(k)
            if k >= 5: A(f"s_waitcnt vmcnt({n})")
            for t in range(5):
                for j in range(2):
                    A(f"ds_read_b64_tr_b16 {v(WFR+4*t+2*j,2)}, v{rd} offset:{off + j*1280 + t*64}")
            if k < 5:
                A("s_waitcnt lgkmcnt(0)")
                wo_stage(k + 5); order.append(("d", k + 5))
                n += 5
                A(f"s_waitcnt vmcnt({n})")
            if k == 0: gst(5)
            for t in range(5):
                if k >= 5: A(f"s_waitcnt lgkmcnt({8-2*t})")
                A(f"v_mfma_f32_32x32x16_bf16 {v(ACC+16*t,16)}, {v(WFR+4*t,4)}, {v(OFR+4*k,4)}, {v(ACC+16*t,16)}")
        gst(6)
        A("s_barrier")
        A("s_nop 7")
        red_write()
        A("s_waitcnt lgkmcnt(0)")
        A("s_barrier")
        red_read()
        red_add()
        for t in range(5):
            A(f"v_cvt_pk_bf16_f32 v{OFR+2*t}, v{WFR+4*t}, v{WFR+4*t+1}\nv_cvt_pk_bf16_f32 v{OFR+2*t+1}, v{WFR+4*t+2}, v{WFR+4*t+3}")
            A(f"buffer_store_dwordx2 {v(OFR+2*t,2)}, v{VX}, s[{sOUT}:{sOUT+3}], 0 offen offset:{t*64}")
        gst(7)
        stamp_dump(A, gstamps, 8, sWS, 12, name)
    stamp_out(1, None)
    A.label(f"{name}_end")
    rt_end(A, rt, 1, sWS, name)
    A("s_waitcnt vmcnt(0)")
    A("s_endpgm")
    return A.text(), kernel_desc(name, 168, 168)
```

```python
import sys
sys.path.insert(0, "gen")
from common import *
from build import build, check
import k0, k1b, k2, k3
def opts(tag):
    d = {}
    for a in sys.argv:
        if a.startswith(f"--{tag}:"):
            for x in a[len(tag)+3:].split(","):
                k, v_ = x.split("=")
                d[k] = tuple(int(c) for c in v_.split("/")) if "/" in v_ else int(v_)
    return d
rt = "--rt" in sys.argv
out = [a for a in sys.argv[1:] if a.endswith(".s")][0]
t0, d0 = k0.gen_k0(rt=rt, **opts("k0"))
t1, d1 = k1b.gen_k1(rt=rt, **opts("k1"))
t2, d2 = k2.gen_k2(rt=rt, force_fallback="--fallback" in sys.argv, **opts("k2"))
t3, d3, l3 = k3.gen_k3(rt=rt, **opts("k3"))
ks = [("k0_kernel", t0, d0, 256, 256, 0), ("k1_kernel", t1, d1, 256, 512, k1b.K1_LDS), ("k2_kernel", t2, d2, 256, 768, k2.K2_LDS), ("k3_kernel", t3, d3, 256, 256, l3)]
if opts("k2").get("fuse", 1): ks = ks[:3]
if opts("k1").get("fuse", 0): ks = ks[1:]
build(ks, out)
check(out)
```

```python
from common import *
import struct
def f32bits(x): return struct.unpack("<I", struct.pack("<f", x))[0]
def gen_k0(name="k0_kernel", rt=False, prefetch=1, codepf=0):
    A = Asm()
    A.raw(kernel_header(name))
    sX, sWS, sP = 24, 28, 32
    X, DD, XC = 16, 40, 80
    A("s_cmp_ge_u32 s2, 256")
    A(f"s_cbranch_scc1 {name}_end")
    rt_begin(A, rt)
    A("s_load_dwordx16 s[4:19], s[0:1], 0")
    A("s_load_dwordx2 s[20:21], s[0:1], 72")
    A("v_and_b32 v1, 63, v0")
    A("v_lshrrev_b32 v2, 6, v0")
    A("v_and_b32 v3, 15, v1")
    A("v_readfirstlane_b32 s40, v2")
    A("v_lshrrev_b32 v4, 4, v1")
    A("s_lshl_b32 s41, s2, 3")
    A("s_and_b32 s42, s40, 1\ns_lshl_b32 s42, s42, 2\ns_add_u32 s41, s41, s42")
    A("v_add_u32 v5, s41, v4")
    A("s_movk_i32 s42, 1280")
    A("v_mul_lo_u32 v6, v5, s42")
    A("v_lshl_add_u32 v6, v3, 4, v6")
    A("v_lshlrev_b32 v14, 4, v1")
    A("s_waitcnt lgkmcnt(0)")
    srd(A, sX, 4, 5, S * D * 2)
    srd(A, sWS, 20, 21, WS_SIZE)
    A(f"s_lshl_b32 s42, s2, 2\ns_add_u32 s42, s42, s40\ns_cmp_eq_u32 s42, 3\ns_cbranch_scc0 {name}_nz")
    A(f"v_lshlrev_b32 v15, 8, v1\nv_add_u32 v15, {WS_FLAG}, v15\nv_mov_b32 v13, 0")
    A(f"buffer_store_dword v13, v15, s[{sWS}:{sWS+3}], 0 offen")
    A.label(f"{name}_nz")
    A("s_cmp_ge_u32 s40, 2")
    A(f"s_cbranch_scc1 {name}_pf")
    for j in range(5):
        A(f"buffer_load_dwordx4 {v(X+4*j,4)}, v6, s[{sX}:{sX+3}], 0 offen offset:{j*256}")
    A.label(f"{name}_pf")
    if prefetch:
        A("s_lshl_b32 s43, s2, 2\ns_add_u32 s43, s43, s40\ns_lshl_b32 s43, s43, 10")
        for (lo, size) in ((6, D * 1920 * 2), (12, D * F * 2), (14, D * F * 2), (16, F * D * 2), (8, D * D * 2)):
            srd(A, sP, lo, lo + 1, size)
            for i in range((size + (1 << 20) - 1) >> 20):
                A(f"s_add_u32 s44, s43, {i << 20}")
                A(f"buffer_load_dwordx4 v[120:123], v14, s[{sP}:{sP+3}], s44 offen")
    if codepf:
        A(f"s_cmp_lt_u32 s40, 2\ns_cbranch_scc1 {name}_nocode\ns_cmp_ge_u32 s2, 32\ns_cbranch_scc1 {name}_nocode")
        A("s_getpc_b64 s[46:47]")
        A.label(f"{name}_pcref")
        A(f"s_add_u32 s46, s46, k1_kernel-{name}_pcref\ns_addc_u32 s47, s47, 0")
        A("s_and_b32 s44, s40, 1\ns_lshl_b32 s44, s44, 10\nv_add_u32 v13, s44, v14")
        for i in range(codepf):
            A(f"global_load_dwordx4 v[120:123], v13, s[46:47]")
            A("v_add_u32 v13, 2048, v13")
        A.label(f"{name}_nocode")
    npf = 3 + 2 + 2 + 2 + 1 if prefetch else 0
    A("s_cmp_ge_u32 s40, 2")
    A(f"s_cbranch_scc1 {name}_end")
    A("v_lshrrev_b32 v7, 5, v5\ns_mov_b32 s42, 40960\nv_mul_lo_u32 v7, v7, s42")
    A("v_and_b32 v8, 31, v5\nv_lshl_add_u32 v7, v8, 4, v7")
    A("v_lshl_add_u32 v7, v3, 9, v7")
    A(f"v_add_u32 v7, {WS_XN}, v7")
    A("v_mov_b32 v9, 0x3f803f80\nv_mov_b32 v10, 0\nv_mov_b32 v11, 0")
    A(f"s_waitcnt vmcnt({npf})")
    for i in range(20): A(f"v_dot2c_f32_bf16 v{10+(i&1)}, v{X+i}, v9")
    A("s_nop 3")
    A("v_add_f32 v10, v10, v11")
    def rowsum(r):
        for sh in (8, 4, 2, 1):
            A("s_nop 1")
            A(f"v_add_f32_dpp v{r}, v{r}, v{r} row_ror:{sh} row_mask:0xf bank_mask:0xf")
    rowsum(10)
    A(f"v_mul_f32 v10, {hex(f32bits(1.0/640))}, v10")
    A("v_cvt_pk_bf16_f32 v11, v10, v10\nv_and_b32 v11, 0xffff0000, v11")
    A("v_sub_f32 v10, v10, v11")
    A("v_mov_b32 v12, 0\nv_mov_b32 v13, 0")
    for i in range(20):
        A(f"v_lshlrev_b32 v{DD+2*i}, 16, v{X+i}\nv_and_b32 v{DD+2*i+1}, 0xffff0000, v{X+i}")
        A(f"v_sub_f32 v{DD+2*i}, v{DD+2*i}, v11\nv_sub_f32 v{DD+2*i+1}, v{DD+2*i+1}, v11")
        A(f"v_fmac_f32 v12, v{DD+2*i}, v{DD+2*i}\nv_fmac_f32 v13, v{DD+2*i+1}, v{DD+2*i+1}")
        A(f"v_cvt_pk_bf16_f32 v{XC+i}, v{DD+2*i}, v{DD+2*i+1}")
    A("v_add_f32 v12, v12, v13")
    rowsum(12)
    A(f"v_mul_f32 v12, {hex(f32bits(1.0/640))}, v12")
    A("v_fma_f32 v12, -v10, v10, v12")
    A("v_max_f32 v12, 0, v12")
    A("v_cvt_pk_bf16_f32 v12, v12, v12\nv_lshlrev_b32 v12, 16, v12")
    A(f"v_add_f32 v12, {hex(f32bits(1e-5))}, v12")
    A("v_cvt_pk_bf16_f32 v12, v12, v12\nv_lshlrev_b32 v12, 16, v12")
    A("v_sqrt_f32 v12, v12")
    A("s_nop 0")
    A("v_cvt_pk_bf16_f32 v12, v12, v12\nv_lshlrev_b32 v12, 16, v12")
    A("v_rcp_f32 v13, v12")
    A("s_nop 0")
    A("v_fma_f32 v10, -v12, v13, 1.0\nv_fma_f32 v13, v10, v13, v13")
    for i in range(20):
        A(f"v_lshlrev_b32 v{DD+2*i}, 16, v{XC+i}\nv_and_b32 v{DD+2*i+1}, 0xffff0000, v{XC+i}")
        A(f"v_mul_f32 v{DD+2*i}, v{DD+2*i}, v13\nv_mul_f32 v{DD+2*i+1}, v{DD+2*i+1}, v13")
        A(f"v_cvt_pk_bf16_f32 v{X+i}, v{DD+2*i}, v{DD+2*i+1}")
    for j in range(5):
        if j: A("v_add_u32 v7, 8192, v7")
        A(f"buffer_store_dwordx4 {v(X+4*j,4)}, v7, s[{sWS}:{sWS+3}], 0 offen")
    A.label(f"{name}_end")
    rt_end(A, rt, 3, sWS, name)
    A("s_endpgm")
    return A.text(), kernel_desc(name, 128, 128)
```

```python
from common import *
import struct
def f32bits(x): return struct.unpack("<I", struct.pack("<f", x))[0]
def gen_k0(name="k0_kernel", rt=False, prefetch=0, codepf=8, pfsel=31, pfwaves=0):
    A = Asm()
    A.raw(kernel_header(name))
    sX, sWS, sP = 24, 28, 32
    X, DD, XC = 16, 40, 80
    A("s_cmp_ge_u32 s2, 256")
    A(f"s_cbranch_scc1 {name}_end")
    rt_begin(A, rt)
    A("s_load_dwordx16 s[4:19], s[0:1], 0")
    A("s_load_dwordx2 s[20:21], s[0:1], 72")
    A("v_and_b32 v1, 63, v0")
    A("v_lshrrev_b32 v2, 6, v0")
    A("v_and_b32 v3, 15, v1")
    A("v_readfirstlane_b32 s40, v2")
    A("v_lshrrev_b32 v4, 4, v1")
    A("s_lshl_b32 s41, s2, 3")
    A("s_and_b32 s42, s40, 1\ns_lshl_b32 s42, s42, 2\ns_add_u32 s41, s41, s42")
    A("v_add_u32 v5, s41, v4")
    A("s_movk_i32 s42, 1280")
    A("v_mul_lo_u32 v6, v5, s42")
    A("v_lshl_add_u32 v6, v3, 4, v6")
    A("v_lshlrev_b32 v14, 4, v1")
    A("s_waitcnt lgkmcnt(0)")
    srd(A, sX, 4, 5, S * D * 2)
    srd(A, sWS, 20, 21, WS_SIZE)
    A(f"s_lshl_b32 s42, s2, 2\ns_add_u32 s42, s42, s40\ns_cmp_eq_u32 s42, 3\ns_cbranch_scc0 {name}_nz")
    A(f"v_lshlrev_b32 v15, 8, v1\nv_add_u32 v15, {WS_FLAG}, v15\nv_mov_b32 v13, 0")
    A(f"buffer_store_dword v13, v15, s[{sWS}:{sWS+3}], 0 offen")
    A.label(f"{name}_nz")
    A("s_cmp_ge_u32 s40, 2")
    A(f"s_cbranch_scc1 {name}_pf")
    for j in range(5):
        A(f"buffer_load_dwordx4 {v(X+4*j,4)}, v6, s[{sX}:{sX+3}], 0 offen offset:{j*256}")
    A.label(f"{name}_pf")
    if prefetch:
        A("s_lshl_b32 s43, s2, 2\ns_add_u32 s43, s43, s40\ns_lshl_b32 s43, s43, 10")
        npf_ = 0
        for bi, (lo, size) in enumerate(((6, D * 1920 * 2), (12, D * F * 2), (14, D * F * 2), (16, F * D * 2), (8, D * D * 2))):
            if not (pfsel >> bi) & 1: continue
            npf_ += (size + (1 << 20) - 1) >> 20
            srd(A, sP, lo, lo + 1, size)
            for i in range((size + (1 << 20) - 1) >> 20):
                A(f"s_add_u32 s44, s43, {i << 20}")
                A(f"buffer_load_dwordx4 v[120:123], v14, s[{sP}:{sP+3}], s44 offen")
    if codepf:
        A(f"s_cmp_lt_u32 s40, 2\ns_cbranch_scc1 {name}_nocode\ns_cmp_ge_u32 s2, 32\ns_cbranch_scc1 {name}_nocode")
        A("s_getpc_b64 s[46:47]")
        A.label(f"{name}_pcref")
        A(f"s_add_u32 s46, s46, k1_kernel-{name}_pcref\ns_addc_u32 s47, s47, 0")
        A("s_and_b32 s44, s40, 1\ns_lshl_b32 s44, s44, 10\nv_add_u32 v13, s44, v14")
        for i in range(codepf):
            A(f"global_load_dwordx4 v[120:123], v13, s[46:47]")
            A("v_add_u32 v13, 2048, v13")
        A.label(f"{name}_nocode")
    npf = npf_ if prefetch else 0
    A("s_cmp_ge_u32 s40, 2")
    A(f"s_cbranch_scc1 {name}_end")
    A("v_lshrrev_b32 v7, 5, v5\ns_mov_b32 s42, 40960\nv_mul_lo_u32 v7, v7, s42")
    A("v_and_b32 v8, 31, v5\nv_lshl_add_u32 v7, v8, 4, v7")
    A("v_lshl_add_u32 v7, v3, 9, v7")
    A(f"v_add_u32 v7, {WS_XN}, v7")
    A("v_mov_b32 v9, 0x3f803f80\nv_mov_b32 v10, 0\nv_mov_b32 v11, 0")
    A(f"s_waitcnt vmcnt({npf})")
    for i in range(20): A(f"v_dot2c_f32_bf16 v{10+(i&1)}, v{X+i}, v9")
    A("s_nop 3")
    A("v_add_f32 v10, v10, v11")
    def rowsum(r):
        for sh in (8, 4, 2, 1):
            A("s_nop 1")
            A(f"v_add_f32_dpp v{r}, v{r}, v{r} row_ror:{sh} row_mask:0xf bank_mask:0xf")
    rowsum(10)
    A(f"v_mul_f32 v10, {hex(f32bits(1.0/640))}, v10")
    A("v_cvt_pk_bf16_f32 v11, v10, v10\nv_and_b32 v11, 0xffff0000, v11")
    A("v_sub_f32 v10, v10, v11")
    A("v_mov_b32 v12, 0\nv_mov_b32 v13, 0")
    for i in range(20):
        A(f"v_lshlrev_b32 v{DD+2*i}, 16, v{X+i}\nv_and_b32 v{DD+2*i+1}, 0xffff0000, v{X+i}")
        A(f"v_sub_f32 v{DD+2*i}, v{DD+2*i}, v11\nv_sub_f32 v{DD+2*i+1}, v{DD+2*i+1}, v11")
        A(f"v_fmac_f32 v12, v{DD+2*i}, v{DD+2*i}\nv_fmac_f32 v13, v{DD+2*i+1}, v{DD+2*i+1}")
        A(f"v_cvt_pk_bf16_f32 v{XC+i}, v{DD+2*i}, v{DD+2*i+1}")
    A("v_add_f32 v12, v12, v13")
    rowsum(12)
    A(f"v_mul_f32 v12, {hex(f32bits(1.0/640))}, v12")
    A("v_fma_f32 v12, -v10, v10, v12")
    A("v_max_f32 v12, 0, v12")
    A("v_cvt_pk_bf16_f32 v12, v12, v12\nv_lshlrev_b32 v12, 16, v12")
    A(f"v_add_f32 v12, {hex(f32bits(1e-5))}, v12")
    A("v_cvt_pk_bf16_f32 v12, v12, v12\nv_lshlrev_b32 v12, 16, v12")
    A("v_sqrt_f32 v12, v12")
    A("s_nop 0")
    A("v_cvt_pk_bf16_f32 v12, v12, v12\nv_lshlrev_b32 v12, 16, v12")
    A("v_rcp_f32 v13, v12")
    A("s_nop 0")
    A("v_fma_f32 v10, -v12, v13, 1.0\nv_fma_f32 v13, v10, v13, v13")
    for i in range(20):
        A(f"v_lshlrev_b32 v{DD+2*i}, 16, v{XC+i}\nv_and_b32 v{DD+2*i+1}, 0xffff0000, v{XC+i}")
        A(f"v_mul_f32 v{DD+2*i}, v{DD+2*i}, v13\nv_mul_f32 v{DD+2*i+1}, v{DD+2*i+1}, v13")
        A(f"v_cvt_pk_bf16_f32 v{X+i}, v{DD+2*i}, v{DD+2*i+1}")
    for j in range(5):
        if j: A("v_add_u32 v7, 8192, v7")
        A(f"buffer_store_dwordx4 {v(X+4*j,4)}, v7, s[{sWS}:{sWS+3}], 0 offen")
    A.label(f"{name}_end")
    rt_end(A, rt, 3, sWS, name)
    A("s_endpgm")
    return A.text(), kernel_desc(name, 128, 128)
```

```python
from common import *
import struct
def f32bits(x): return struct.unpack("<I", struct.pack("<f", x))[0]
NSLOT = 5
P1OFF = 10272
XOFF = 21536
SLOT = XOFF + 8192
K1_LDS = NSLOT * SLOT

def gen_k1(name="k1_kernel", rt=False, stamps=False, map_mode=0, perm=1, rotate=1, dma_gaps=(8, 9, 0, 1), wait_every=2, exp=0, Dahead=6, fuse=0, sleep0=32, sleep1=8, pf=1):
    A = Asm()
    stamp = mk_stamp(A, stamps)
    A.raw(kernel_header(name))
    WF, XC = 24, 64
    RD, LP, XRD, XLP, VL16 = 72, 73, 74, 75, 76
    DMA = 77
    MF = 80
    LANE = 1
    sW, sWS = 28, 32
    sWAVE, sMB, sNB, sLDW, sDOFF, sSTEP, sWR, sRD, sC, sWRC = 40, 41, 42, 43, 44, 45, 47, 48, 49, 46
    sM0 = 52
    sTG, sPH, sXO, sTAU, sCOL, sXB = 56, 57, 58, 59, 65, 68
    sROW0, sHS, sHO, sHFM = 62, 63, 64, 66
    A("s_cmp_ge_u32 s2, 256")
    A(f"s_cbranch_scc1 {name}_end")
    rt_begin(A, rt)
    stamp(0)
    A("s_load_dwordx16 s[4:19], s[0:1], 0")
    A("s_load_dwordx4 s[20:23], s[0:1], 64")
    A(f"v_and_b32 v{LANE}, 63, v0")
    A("v_lshrrev_b32 v2, 6, v0")
    A("s_and_b32 s50, s2, 7\ns_lshr_b32 s51, s2, 3")
    A(f"v_readfirstlane_b32 s{sWAVE}, v2")
    if map_mode == 0:
        A(f"s_and_b32 s{sMB}, s50, 1\ns_lshl_b32 s{sMB}, s{sMB}, 3\ns_and_b32 s60, s51, 7\ns_add_u32 s{sMB}, s{sMB}, s60")
        A(f"s_lshr_b32 s{sNB}, s50, 1\ns_lshl_b32 s{sNB}, s{sNB}, 2\ns_lshr_b32 s60, s51, 3\ns_add_u32 s{sNB}, s{sNB}, s60")
    else:
        A(f"s_and_b32 s{sMB}, s50, 3\ns_lshl_b32 s{sMB}, s{sMB}, 2\ns_and_b32 s60, s51, 3\ns_add_u32 s{sMB}, s{sMB}, s60")
        A(f"s_lshr_b32 s{sNB}, s50, 2\ns_lshl_b32 s{sNB}, s{sNB}, 3\ns_lshr_b32 s60, s51, 2\ns_add_u32 s{sNB}, s{sNB}, s60")
    A(f"s_mov_b32 s69, s{sNB}")
    if perm:
        order = [0, 1, 6, 7, 2, 3, 8, 9, 4, 10, 11, 12, 5, 13, 14, 15] if map_mode == 0 else [0, 1, 2, 6, 7, 8, 9, 10, 3, 4, 5, 11, 12, 13, 14, 15]
        tab = sum(o << (4 * i) for i, o in enumerate(order))
        A(f"s_mov_b32 s60, {hex(tab & 0xffffffff)}\ns_mov_b32 s61, {hex(tab >> 32)}\ns_lshl_b32 s{sNB}, s{sNB}, 2\ns_lshr_b64 s[60:61], s[60:61], s{sNB}\ns_and_b32 s{sNB}, s60, 15")
    A(f"s_and_b32 s{sTG}, s{sWAVE}, 3\ns_lshr_b32 s{sPH}, s{sWAVE}, 2")
    A(f"s_lshl_b32 s{sROW0}, s{sMB}, 7\ns_lshl_b32 s60, s{sTG}, 5\ns_add_u32 s{sROW0}, s{sROW0}, s60")
    if rotate:
        A(f"s_add_u32 s60, s{sMB}, s{sNB}\ns_mul_i32 s60, s60, 3\ns_mul_i32 s61, s60, 205\ns_lshr_b32 s61, s61, 12\ns_mul_i32 s61, s61, 20\ns_sub_u32 s{sTAU}, s60, s61")
    else:
        A(f"s_mov_b32 s{sTAU}, 0")
    A(f"v_lshlrev_b32 v{VL16}, 4, v{LANE}")
    A(f"s_cmp_lt_u32 s{sNB}, 6")
    A(f"s_cselect_b32 s{sLDW}, 3840, 0\ns_cselect_b32 s60, 0, 3072\ns_add_u32 s{sLDW}, s{sLDW}, s60")
    A(f"s_mul_i32 s{sCOL}, s{sNB}, 640\ns_mul_i32 s51, s{sPH}, 320\ns_add_u32 s{sCOL}, s{sCOL}, s51")
    A(f"s_sub_u32 s60, s{sNB}, 6\ns_mul_i32 s60, s60, 320")
    A(f"s_cmp_lt_u32 s{sNB}, 6\ns_cselect_b32 s{sCOL}, s{sCOL}, s60")
    A(f"s_lshl_b32 s{sSTEP}, s{sLDW}, 5")
    A(f"s_mul_i32 s51, s{sTG}, 192")
    A("s_movk_i32 s60, 3277")
    A(f"s_mul_i32 s50, s{sPH}, {P1OFF}")
    A(f"s_mul_i32 s61, s{sTG}, 3072\ns_add_u32 s50, s50, s61")
    for j in range(3):
        A(f"v_add_u32 v5, s51, v{LANE}")
        if j: A(f"v_add_u32 v5, {j*64}, v5")
        A("v_mul_lo_u32 v6, v5, s60")
        A("v_lshrrev_b32 v6, 16, v6")
        A("v_mul_u32_u24 v7, 20, v6")
        A("v_sub_u32 v7, v5, v7")
        A(f"v_mul_lo_u32 v6, v6, s{sLDW}")
        A(f"v_lshl_add_u32 v{DMA+j}, v7, 4, v6")
        A(f"s_add_u32 s{sM0+j}, s50, {j*1024}")
        if j > 0:
            A(f"s_cmp_eq_u32 s{sTG}, 3")
            A(f"s_cselect_b32 s{sM0+j}, 20512, s{sM0+j}")
            A(f"s_cselect_b32 s61, 0x7ff00000, 0")
            A(f"v_or_b32 v{DMA+j}, s61, v{DMA+j}")
    A(f"s_lshl_b32 s60, s{sTG}, 11\ns_lshl_b32 s61, s{sPH}, 10\ns_add_u32 s60, s60, s61\ns_add_u32 s{sM0+3}, s60, {XOFF}")
    A(f"s_lshr_b32 s{sXB}, s{sROW0}, 5\ns_mul_i32 s{sXB}, s{sXB}, 40960\ns_add_u32 s{sXB}, s{sXB}, s61\ns_add_u32 s{sXB}, s{sXB}, {WS_XN}")
    A("s_waitcnt lgkmcnt(0)")
    srd(A, sWS, 22, 23, WS_SIZE)
    A(f"s_cmp_lt_u32 s{sNB}, 6")
    A(f"s_cbranch_scc0 {name}_gu_src")
    A(f"s_mov_b32 s{sW}, s6\ns_and_b32 s{sW+1}, s7, 0xffff\ns_mov_b32 s{sW+2}, {D*1920*2}")
    A(f"s_branch {name}_src_done")
    A.label(f"{name}_gu_src")
    A(f"s_cmp_eq_u32 s{sPH}, 0")
    A(f"s_cselect_b32 s{sW}, s12, s14\ns_cselect_b32 s{sW+1}, s13, s15")
    A(f"s_and_b32 s{sW+1}, s{sW+1}, 0xffff\ns_mov_b32 s{sW+2}, {D*F*2}")
    A.label(f"{name}_src_done")
    A(f"s_mov_b32 s{sW+3}, 0x00020000")
    def src_ops():
        return [f"s_mul_i32 s50, s{sTAU}, s{sSTEP}", f"s_add_u32 s50, s50, s{sCOL}", f"s_lshl_b32 s51, s{sTAU}, 11", f"s_add_u32 s51, s51, s{sXB}",
                f"s_add_u32 s{sTAU}, s{sTAU}, 1", f"s_cmp_ge_u32 s{sTAU}, 20", f"s_cselect_b32 s{sTAU}, 0, s{sTAU}"]
    def dma_i(j, slot_expr):
        m0 = f"s_add_u32 m0, s{sM0+j}, {slot_expr}"
        ld = f"buffer_load_dwordx4 v{DMA+j}, s[{sW}:{sW+3}], s50 offen lds" if j < 3 else f"buffer_load_dwordx4 v{VL16}, s[{sWS}:{sWS+3}], s51 offen lds"
        return m0, ld
    NPRE = NSLOT - 1
    def pre_chunk(c, which=(3, 0, 1, 2), src=True):
        if src:
            for o in src_ops(): A(o)
        for j in which:
            m0, ld = dma_i(j, c * SLOT)
            if j == 3 and fuse: ld = ld.replace(" lds", " sc1 lds")
            A(m0); A("s_nop 0"); A(ld)
    def setup_addrs():
        A(f"v_and_b32 v6, 31, v{LANE}\nv_lshrrev_b32 v7, 5, v{LANE}")
        A(f"v_cmp_lt_u32 s[{sHFM}:{sHFM+1}], 31, v{LANE}")
        A(f"v_and_b32 v21, 15, v{LANE}\nv_lshrrev_b32 v22, 2, v21\nv_lshl_add_u32 v22, v7, 3, v22")
        A(f"v_mul_u32_u24 v{LP}, 320, v22\nv_and_b32 v22, 3, v21\nv_lshl_add_u32 v{LP}, v22, 3, v{LP}")
        A(f"v_bfe_u32 v22, v{LANE}, 4, 1\nv_mul_u32_u24 v22, {P1OFF}, v22\nv_add_u32 v{LP}, v22, v{LP}")
        A(f"s_mul_i32 s60, s{sPH}, 160\nv_add_u32 v{LP}, s60, v{LP}\nv_mov_b32 v{RD}, v{LP}")
        A(f"s_lshl_b32 s60, s{sTG}, 11\ns_add_u32 s60, s60, {XOFF}\nv_add_u32 v{XLP}, s60, v{VL16}\nv_mov_b32 v{XRD}, v{XLP}")
        for i in range(80): A(f"v_accvgpr_write_b32 a{i}, 0")
        A(f"s_mov_b32 s{sC}, 0\ns_mov_b32 s{sRD}, 0\ns_mov_b32 s{sWR}, {NPRE*SLOT}\ns_mov_b32 s{sWRC}, {NPRE*SLOT}")
    if not fuse:
        pre_chunk(0)
        stamp(1)
        pre_chunk(1)
        setup_addrs()
        A("s_waitcnt vmcnt(4)")
        A("s_barrier")
    else:
        B = 88
        X, DD = B + 16, B + 40
        XCC = X
        sX, sP, sDBG = 24, 36, 72
        srd(A, sX, 4, 5, S * D * 2)
        srd(A, sDBG, 20, 21, 256)
        A(f"s_cmp_ge_u32 s{sWAVE}, 2")
        A(f"s_cbranch_scc1 {name}_noln1")
        A(f"v_and_b32 v{B+3}, 15, v{LANE}\nv_lshrrev_b32 v{B+4}, 4, v{LANE}")
        A(f"s_lshl_b32 s60, s{sMB}, 7\ns_lshl_b32 s61, s69, 3\ns_add_u32 s60, s60, s61\ns_lshl_b32 s61, s{sWAVE}, 2\ns_add_u32 s60, s60, s61")
        A(f"v_add_u32 v{B+5}, s60, v{B+4}\ns_movk_i32 s61, 1280\nv_mul_lo_u32 v{B+6}, v{B+5}, s61\nv_lshl_add_u32 v{B+6}, v{B+3}, 4, v{B+6}")
        for j in range(5):
            A(f"buffer_load_dwordx4 {v(X+4*j,4)}, v{B+6}, s[{sX}:{sX+3}], 0 offen offset:{j*256}")
        A.label(f"{name}_noln1")
        pre_chunk(0, which=(0, 1, 2)); A("s_mov_b32 s98, s51")
        pre_chunk(1, which=(0, 1, 2)); A("s_mov_b32 s99, s51")
        stamp(1)
        A(f"s_cmp_ge_u32 s{sWAVE}, 2")
        A(f"s_cbranch_scc1 {name}_noln2")
        A(f"v_lshrrev_b32 v{B+7}, 5, v{B+5}\ns_mov_b32 s61, 40960\nv_mul_lo_u32 v{B+7}, v{B+7}, s61")
        A(f"v_and_b32 v{B+8}, 31, v{B+5}\nv_lshl_add_u32 v{B+7}, v{B+8}, 4, v{B+7}\nv_lshl_add_u32 v{B+7}, v{B+3}, 9, v{B+7}\nv_add_u32 v{B+7}, {WS_XN}, v{B+7}")
        A(f"v_mov_b32 v{B+9}, 0x3f803f80\nv_mov_b32 v{B+10}, 0\nv_mov_b32 v{B+11}, 0")
        A("s_waitcnt vmcnt(6)")
        for i in range(20): A(f"v_dot2c_f32_bf16 v{B+10+(i&1)}, v{X+i}, v{B+9}")
        A("s_nop 3")
        A(f"v_add_f32 v{B+10}, v{B+10}, v{B+11}")
        def rowsum(r):
            for sh in (8, 4, 2, 1):
                A("s_nop 1")
                A(f"v_add_f32_dpp v{r}, v{r}, v{r} row_ror:{sh} row_mask:0xf bank_mask:0xf")
        rowsum(B + 10)
        A(f"v_mul_f32 v{B+10}, {hex(f32bits(1.0/640))}, v{B+10}")
        A(f"v_cvt_pk_bf16_f32 v{B+11}, v{B+10}, v{B+10}\nv_and_b32 v{B+11}, 0xffff0000, v{B+11}")
        A(f"v_sub_f32 v{B+10}, v{B+10}, v{B+11}")
        A(f"v_mov_b32 v{B+12}, 0\nv_mov_b32 v{B+13}, 0")
        for i in range(20):
            A(f"v_lshlrev_b32 v{DD+2*i}, 16, v{X+i}\nv_and_b32 v{DD+2*i+1}, 0xffff0000, v{X+i}")
            A(f"v_sub_f32 v{DD+2*i}, v{DD+2*i}, v{B+11}\nv_sub_f32 v{DD+2*i+1}, v{DD+2*i+1}, v{B+11}")
            A(f"v_fmac_f32 v{B+12}, v{DD+2*i}, v{DD+2*i}\nv_fmac_f32 v{B+13}, v{DD+2*i+1}, v{DD+2*i+1}")
            A(f"v_cvt_pk_bf16_f32 v{XCC+i}, v{DD+2*i}, v{DD+2*i+1}")
        A(f"v_add_f32 v{B+12}, v{B+12}, v{B+13}")
        rowsum(B + 12)
        r = B + 12
        A(f"v_mul_f32 v{r}, {hex(f32bits(1.0/640))}, v{r}")
        A(f"v_fma_f32 v{r}, -v{B+10}, v{B+10}, v{r}\nv_max_f32 v{r}, 0, v{r}")
        A(f"v_cvt_pk_bf16_f32 v{r}, v{r}, v{r}\nv_lshlrev_b32 v{r}, 16, v{r}")
        A(f"v_add_f32 v{r}, {hex(f32bits(1e-5))}, v{r}")
        A(f"v_cvt_pk_bf16_f32 v{r}, v{r}, v{r}\nv_lshlrev_b32 v{r}, 16, v{r}")
        A(f"v_sqrt_f32 v{r}, v{r}\ns_nop 0")
        A(f"v_cvt_pk_bf16_f32 v{r}, v{r}, v{r}\nv_lshlrev_b32 v{r}, 16, v{r}")
        A(f"v_rcp_f32 v{B+13}, v{r}\ns_nop 0")
        A(f"v_fma_f32 v{B+10}, -v{r}, v{B+13}, 1.0\nv_fma_f32 v{B+13}, v{B+10}, v{B+13}, v{B+13}")
        for i in range(20):
            A(f"v_lshlrev_b32 v{DD+2*i}, 16, v{XCC+i}\nv_and_b32 v{DD+2*i+1}, 0xffff0000, v{XCC+i}")
            A(f"v_mul_f32 v{DD+2*i}, v{DD+2*i}, v{B+13}\nv_mul_f32 v{DD+2*i+1}, v{DD+2*i+1}, v{B+13}")
            A(f"v_cvt_pk_bf16_f32 v{X+i}, v{DD+2*i}, v{DD+2*i+1}")
        for j in range(5):
            if j: A(f"v_add_u32 v{B+7}, 8192, v{B+7}")
            A(f"buffer_store_dwordx4 {v(X+4*j,4)}, v{B+7}, s[{sWS}:{sWS+3}], 0 offen sc1")
        setup_addrs()
        A("s_waitcnt vmcnt(0)")
        A(f"s_branch {name}_lnbar")
        A.label(f"{name}_noln2")
        setup_addrs()
        A(f"s_mul_i32 s60, s2, 6\ns_add_u32 s60, s60, s{sWAVE}\ns_sub_u32 s60, s60, 2\ns_lshl_b32 s60, s60, 10")
        srd(A, sP, 16, 17, F * D * 2)
        A(f"buffer_load_dwordx4 v[100:103], v{VL16}, s[{sP}:{sP+3}], s60 offen")
        A(f"s_add_u32 s61, s60, {1536*1024}")
        A(f"buffer_load_dwordx4 v[100:103], v{VL16}, s[{sP}:{sP+3}], s61 offen")
        srd(A, sP, 8, 9, D * D * 2)
        A(f"buffer_load_dwordx4 v[100:103], v{VL16}, s[{sP}:{sP+3}], s60 offen")
        A(f"s_cmp_eq_u32 s60, 0\ns_cbranch_scc0 {name}_nz")
        A(f"v_lshlrev_b32 v104, 8, v{LANE}\nv_add_u32 v104, {WS_FLAG}, v104\nv_mov_b32 v105, 0")
        A(f"buffer_store_dword v105, v104, s[{sWS}:{sWS+3}], 0 offen")
        A.label(f"{name}_nz")
        A.label(f"{name}_lnbar")
        A("s_barrier")
        A(f"s_cmp_eq_u32 s{sWAVE}, 7")
        A(f"s_cbranch_scc0 {name}_lnjoin")
        A(f"v_mov_b32 v104, 0\nv_mov_b32 v105, 1\ns_lshl_b32 s61, s{sMB}, 4\ns_add_u32 s50, s61, s69\ns_mov_b32 s60, 0")
        A("s_mov_b64 exec, 1")
        A(f"buffer_store_byte v105, v104, s[{sDBG}:{sDBG+3}], s50 offen sc1")
        if sleep0: A(f"s_sleep {sleep0}")
        A.label(f"{name}_poll")
        A(f"buffer_load_dwordx4 v[108:111], v104, s[{sDBG}:{sDBG+3}], s61 offen sc1")
        A("s_add_u32 s60, s60, 1")
        A("s_waitcnt vmcnt(0)")
        A("v_and_b32 v108, v108, v109\nv_and_b32 v110, v110, v111\nv_and_b32 v108, v108, v110")
        A("s_nop 0")
        A("v_readfirstlane_b32 s50, v108")
        A("s_nop 3")
        A("s_cmp_eq_u32 s50, 0x01010101")
        A(f"s_cbranch_scc1 {name}_go")
        A(f"s_sleep {sleep1}")
        A("s_cmp_lt_u32 s60, 0x40000")
        A(f"s_cbranch_scc1 {name}_poll")
        A.label(f"{name}_go")
        A("s_mov_b64 exec, -1")
        A.label(f"{name}_lnjoin")
        A("s_barrier")
        A("s_mov_b32 s51, s98"); pre_chunk(0, which=(3,), src=False)
        A("s_mov_b32 s51, s99"); pre_chunk(1, which=(3,), src=False)
        A("s_waitcnt vmcnt(1)")
        A("s_barrier")
    stamp(2)
    def rd_ops(m):
        ks, tp = divmod(m % 10, 5)
        buf = WF + 4 * (m % 10)
        return [f"ds_read_b64_tr_b16 {v(buf+2*j,2)}, v{RD} offset:{(16*ks+4*j)*320 + tp*32}" for j in range(2)]
    for m in range(Dahead):
        for o in rd_ops(m): A(o)
    A(f"ds_read_b128 {v(XC,4)}, v{XRD}\nds_read_b128 {v(XC+4,4)}, v{XRD} offset:1024")
    for c in range(2, NPRE): pre_chunk(c)
    if pf and not fuse:
        A(f"s_lshl_b32 s60, s2, 3\ns_add_u32 s60, s60, s{sWAVE}\ns_lshl_b32 s60, s60, 10")
        srd(A, 36, 16, 17, F * D * 2)
        A(f"buffer_load_dwordx4 v[16:19], v{VL16}, s[36:39], s60 offen")
        srd(A, 36, 8, 9, D * D * 2)
        A(f"buffer_load_dwordx4 v[16:19], v{VL16}, s[36:39], s60 offen")
    A("s_mov_b32 s50, 0x40000000\ns_mov_b32 s51, 0x40000000")
    A("s_waitcnt lgkmcnt(0)")
    bar_gap = 10 - Dahead - 1
    fill = {g: [] for g in range(10)}
    fill[bar_gap] += [f"s_waitcnt vmcnt({4*(NPRE-2)})", "s_barrier",
                      f"s_mov_b32 s{sWR}, s{sWRC}", f"s_mov_b32 s{sWRC}, s{sRD}",
                      f"s_add_u32 s{sRD}, s{sRD}, {SLOT}", f"s_cmp_ge_u32 s{sRD}, {NSLOT*SLOT}", f"s_cselect_b32 s{sRD}, 0, s{sRD}",
                      f"v_add_u32 v{RD}, s{sRD}, v{LP}", f"v_add_u32 v{XRD}, s{sRD}, v{XLP}"]
    so = src_ops()
    fill[bar_gap + 1] += so[:4]
    fill[bar_gap + 2] += so[4:] + [f"s_cmp_lt_u32 s{sC}, {20-NPRE}", "s_cselect_b32 s50, s50, 0x40000000", "s_cselect_b32 s51, s51, 0x40000000"]
    assert all(g > bar_gap + 2 or g < bar_gap for g in dma_gaps)
    for j in range(4):
        if exp & 1: continue
        m0, ld = dma_i(j, f"s{sWR}")
        if j == 3 and fuse: ld = ld.replace(" lds", " sc1 lds")
        fill[dma_gaps[j]] = [("m0", m0), ("dma", ld)] + fill[dma_gaps[j]]
    fill[9] += [f"s_add_u32 s{sC}, s{sC}, 1", f"s_cmp_lt_u32 s{sC}, 20", f"s_cbranch_scc1 {name}_loop"]
    xrd = {4: f"ds_read_b128 {v(XC,4)}, v{XRD}", 9: f"ds_read_b128 {v(XC+4,4)}, v{XRD} offset:1024"}
    assert bar_gap < 4
    stream = []
    for m in range(10):
        ks, tp = divmod(m, 5)
        stream.append(("mfma", m, f"v_mfma_f32_32x32x16_bf16 {a(16*tp,16)}, {v(WF+4*m,4)}, {v(XC+4*ks,4)}, {a(16*tp,16)}"))
        m0s = [o for o in fill[m] if isinstance(o, tuple) and o[0] == "m0"]
        if m0s: stream.append(("other", None, m0s[0][1]))
        for o in rd_ops(m + Dahead): stream.append(("lds", ("w", (m + Dahead) % 10), o))
        if m in xrd: stream.append(("lds", ("x", 0 if m == 4 else 1), xrd[m]))
        seen = 0
        for o in fill[m]:
            if isinstance(o, tuple):
                if o[0] == "m0":
                    seen += 1
                    if seen == 1: continue
                    stream.append(("other", None, o[1])); stream.append(("other", None, "s_nop 0"))
                else: stream.append(("other", None, o[1]))
            elif exp & 2 and o == "s_barrier": continue
            else: stream.append(("other", None, o))
    A(".p2align 6")
    A.label(f"{name}_loop")
    L = len(stream); full = stream + stream
    def need_n(pos, tag):
        p = max(q for q in range(pos) if full[q][0] == "lds" and full[q][1] == tag)
        return sum(1 for q in range(p + 1, pos) if full[q][0] == "lds")
    for q, (kind, tag, txt) in enumerate(stream):
        if kind == "mfma" and tag % wait_every == 0:
            ns = []
            for mm in range(tag, min(tag + wait_every, 10)): ns += [need_n(L + q, ("w", mm)), need_n(L + q, ("x", mm // 5))]
            A(f"s_waitcnt lgkmcnt({min(min(ns), 15)})")
        A(txt)
    A("s_waitcnt lgkmcnt(0)")
    stamp(3)
    A(f"s_cmp_lt_u32 s{sNB}, 6")
    A(f"s_cbranch_scc0 {name}_epi_h")
    VA = 24
    A(f"s_and_b32 s50, s{sNB}, 1\ns_lshl_b32 s50, s50, 4\ns_lshl_b32 s51, s{sPH}, 2\ns_add_u32 s65, s50, s51")
    A(f"v_mov_b32 v{MF}, 1.0")
    A(f"s_cmp_lt_u32 s{sNB}, 4")
    A(f"s_cbranch_scc0 {name}_epi_v")
    A(f"s_cmp_lt_u32 s{sNB}, 2")
    A(f"s_cbranch_scc0 {name}_epi_k")
    A(f"s_mov_b32 s{sHS}, {Q_HEAD}")
    A(f"s_lshr_b32 s51, s{sROW0}, 5\ns_mul_i32 s51, s51, {QK_TILE}\ns_add_u32 s50, s51, {WS_Q}")
    A(f"v_mov_b32 v{MF}, {hex(f32bits((20 ** -0.5) * 1.4426950408889634))}")
    A(f"s_branch {name}_epi_qk")
    A.label(f"{name}_epi_k")
    A(f"s_mov_b32 s{sHS}, {KV_HEAD}")
    A(f"s_lshr_b32 s51, s{sROW0}, 8\ns_mul_i32 s51, s51, {KV_CHUNK}\ns_add_u32 s50, s51, {WS_KV}")
    A(f"s_lshr_b32 s51, s{sROW0}, 5\ns_and_b32 s51, s51, 7\ns_mul_i32 s51, s51, {QK_TILE}\ns_add_u32 s50, s50, s51")
    A.label(f"{name}_epi_qk")
    A(f"s_mul_i32 s51, s65, s{sHS}\ns_add_u32 s50, s50, s51")
    A("v_lshlrev_b32 v2, 4, v6\nv_add_u32 v2, s50, v2")
    A("v_lshlrev_b32 v3, 3, v6\nv_add_u32 v3, s50, v3\nv_add_u32 v3, 1024, v3")
    A(f"v_add_u32 v8, s{sHS}, v2")
    offs = [("v2", 0), ("v2", 8), ("v2", 512), ("v2", 520), ("v3", 0), ("v8", 0)]
    for dq in range(5):
        (b0, c0), (b1, c1_) = offs[dq], offs[dq + 1]
        A(f"v_add_u32 v4, {c0}, {b0}\nv_add_u32 v5, {c1_}, {b1}")
        A(f"v_cndmask_b32 v{VA+dq}, v4, v5, s[{sHFM}:{sHFM+1}]")
    A(f"s_branch {name}_epi_qkv")
    A.label(f"{name}_epi_v")
    A(f"s_mov_b32 s{sHS}, {KV_HEAD}")
    A(f"s_lshr_b32 s51, s{sROW0}, 8\ns_mul_i32 s51, s51, {KV_CHUNK}\ns_add_u32 s50, s51, {WS_KV + KV_VOFF}")
    A(f"s_lshr_b32 s51, s{sROW0}, 5\ns_and_b32 s51, s51, 7\ns_mul_i32 s51, s51, {V_TILE}\ns_add_u32 s50, s50, s51")
    A(f"s_mul_i32 s51, s65, s{sHS}\ns_add_u32 s50, s50, s51")
    A("v_lshlrev_b32 v2, 3, v6\nv_add_u32 v2, s50, v2")
    for dq in range(5):
        c0, c1_ = dq * V_PLANE, ((dq + 1) * V_PLANE if dq < 4 else KV_HEAD)
        A(f"v_add_u32 v4, {c0}, v2\nv_add_u32 v5, {c1_}, v2")
        A(f"v_cndmask_b32 v{VA+dq}, v4, v5, s[{sHFM}:{sHFM+1}]")
    A(f"s_mov_b32 s51, {8*KV_HEAD}\nv_mul_lo_u32 v3, v7, s51\nv_add_u32 v3, v3, v2")
    A("v_mov_b32 v4, 0x3f80\nv_mov_b32 v5, 0\nv_mov_b32 v8, 0\nv_mov_b32 v9, 0")
    A(f"v_lshrrev_b32 v10, 2, v6\nv_mul_u32_u24 v10, {V_PLANE}, v10\nv_and_b32 v11, 3, v6\nv_lshl_add_u32 v10, v11, 3, v10\nv_add_u32 v10, 256, v10")
    A(f"v_lshlrev_b32 v11, 3, v6\nv_add_u32 v11, {1728-192}, v11\nv_cmp_lt_u32 vcc, 23, v6\ns_nop 1\nv_cndmask_b32 v10, v10, v11, vcc")
    A("v_lshlrev_b32 v11, 3, v6\nv_sub_u32 v11, v3, v11\nv_add_u32 v10, v10, v11")
    A(f"s_mov_b32 s{sHO}, 0")
    for i in range(4):
        A(f"buffer_store_dwordx2 v[8:9], v10, s[{sWS}:{sWS+3}], s{sHO} offen")
        A(f"buffer_store_dwordx2 v[4:5], v3, s[{sWS}:{sWS+3}], s{sHO} offen offset:{5*V_PLANE}")
        if i < 3: A(f"s_add_u32 s{sHO}, s{sHO}, s{sHS}")
    A.label(f"{name}_epi_qkv")
    A(f"v_mov_b32 v{MF+1}, v{MF}")
    A(f"s_lshl_b32 s61, s{sHS}, 3")
    q = 0
    for p in range(2):
        cur = 0
        A(f"s_mov_b32 s{sHO}, 0" if p == 0 else f"s_mov_b32 s{sHO}, s61")
        for tp in range(5):
            for a2 in range(2):
                g0 = 4 * tp + 2 * a2
                hh, dq0 = g0 // 5, g0 % 5
                while cur < hh:
                    A(f"s_add_u32 s{sHO}, s{sHO}, s{sHS}"); cur += 1
                E = 32 + 8 * (q % 4); q += 1
                base = tp * 16 + 8 * p + 4 * a2
                for i in range(4): A(f"v_accvgpr_read_b32 v{E+i}, a{base+i}")
                A(f"v_pk_mul_f32 {v(E,2)}, {v(E,2)}, {v(MF,2)}\nv_pk_mul_f32 {v(E+2,2)}, {v(E+2,2)}, {v(MF,2)}")
                A(f"v_cvt_pk_bf16_f32 v{E+4}, v{E}, v{E+1}\nv_cvt_pk_bf16_f32 v{E+5}, v{E+2}, v{E+3}")
                A(f"buffer_store_dwordx2 {v(E+4,2)}, v{VA+dq0}, s[{sWS}:{sWS+3}], s{sHO} offen")
    A(f"s_branch {name}_end")
    A.label(f"{name}_epi_h")
    A(f"s_lshr_b32 s50, s{sROW0}, 5\ns_mul_i32 s50, s50, 98304\ns_add_u32 s50, s50, {WS_H}")
    A(f"s_sub_u32 s51, s{sNB}, 6\ns_mul_i32 s51, s51, 10240\ns_add_u32 s50, s50, s51")
    A(f"s_mul_i32 s51, s{sPH}, 5120\ns_add_u32 s50, s50, s51")
    A("v_lshlrev_b32 v2, 4, v6\nv_lshl_add_u32 v2, v7, 3, v2")
    A(f"s_cmp_eq_u32 s{sNB}, 15\ns_cselect_b32 s61, s{sPH}, 0")
    q = 0
    for tp in range(5):
        if tp == 1:
            A(f"s_cmp_eq_u32 s61, 1\ns_cbranch_scc1 {name}_end")
        for a2 in range(2):
            E = 32 + 12 * (q % 2); q += 1
            bg, bu = tp * 16 + 4 * a2, tp * 16 + 8 + 4 * a2
            for i in range(4): A(f"v_accvgpr_read_b32 v{E+i}, a{bg+i}")
            for i in range(4): A(f"v_accvgpr_read_b32 v{E+4+i}, a{bu+i}")
            for i in range(4): A(f"v_max_f32 v{E+i}, 0, v{E+i}")
            A(f"v_pk_mul_f32 {v(E,2)}, {v(E,2)}, {v(E+4,2)}\nv_pk_mul_f32 {v(E+2,2)}, {v(E+2,2)}, {v(E+6,2)}")
            A(f"v_cvt_pk_bf16_f32 v{E+8}, v{E}, v{E+1}\nv_cvt_pk_bf16_f32 v{E+9}, v{E+2}, v{E+3}")
            A(f"buffer_store_dwordx2 {v(E+8,2)}, v2, s[{sWS}:{sWS+3}], s50 offen offset:{(tp%4)*1024 + a2*512}")
        if tp == 3: A("s_add_u32 s50, s50, 4096")
    A.label(f"{name}_end")
    rt_end(A, rt, 0, sWS, name)
    stamp_dump(A, stamps, 4, sWS, 8, name)
    A("s_waitcnt vmcnt(0)")
    A("s_endpgm")
    return A.text(), kernel_desc(name, *((88 + 80, 88) if not fuse else (248, 168)))
```

```python
from common import *
import struct
def f32bits(x): return struct.unpack("<I", struct.pack("<f", x))[0]
def gen_k0(name="k0_kernel", rt=False, prefetch=1, codepf=8, pfsel=24, pfwaves=0, pfrows=0, xflag=1):
    A = Asm()
    A.raw(kernel_header(name))
    sX, sWS, sP = 24, 28, 32
    X, DD, XC = 16, 40, 80
    A("s_cmp_ge_u32 s2, 256")
    A(f"s_cbranch_scc1 {name}_end")
    rt_begin(A, rt)
    A("s_load_dwordx16 s[4:19], s[0:1], 0")
    A("s_load_dwordx2 s[20:21], s[0:1], 72")
    A("v_and_b32 v1, 63, v0")
    A("v_lshrrev_b32 v2, 6, v0")
    A("v_and_b32 v3, 15, v1")
    A("v_readfirstlane_b32 s40, v2")
    A("v_lshrrev_b32 v4, 4, v1")
    A("s_lshl_b32 s41, s2, 3")
    A("s_and_b32 s42, s40, 1\ns_lshl_b32 s42, s42, 2\ns_add_u32 s41, s41, s42")
    A("v_add_u32 v5, s41, v4")
    A("s_movk_i32 s42, 1280")
    A("v_mul_lo_u32 v6, v5, s42")
    A("v_lshl_add_u32 v6, v3, 4, v6")
    A("v_lshlrev_b32 v14, 4, v1")
    A("s_waitcnt lgkmcnt(0)")
    srd(A, sX, 4, 5, S * D * 2)
    srd(A, sWS, 20, 21, WS_SIZE)
    A(f"s_lshl_b32 s42, s2, 2\ns_add_u32 s42, s42, s40\ns_cmp_eq_u32 s42, 3\ns_cbranch_scc0 {name}_nz")
    A(f"v_lshlrev_b32 v15, 8, v1\nv_add_u32 v15, {WS_FLAG}, v15\nv_mov_b32 v13, 0")
    A(f"buffer_store_dword v13, v15, s[{sWS}:{sWS+3}], 0 offen")
    A.label(f"{name}_nz")
    A("s_cmp_ge_u32 s40, 2")
    A(f"s_cbranch_scc1 {name}_pf")
    for j in range(5):
        A(f"buffer_load_dwordx4 {v(X+4*j,4)}, v6, s[{sX}:{sX+3}], 0 offen offset:{j*256}")
    A.label(f"{name}_pf")
    if prefetch:
        A("s_lshl_b32 s43, s2, 2\ns_add_u32 s43, s43, s40\ns_lshl_b32 s43, s43, 10")
        npf_ = 0
        for bi, (lo, size) in enumerate(((6, D * 1920 * 2), (12, D * F * 2), (14, D * F * 2), (16, F * D * 2), (8, D * D * 2))):
            if not (pfsel >> bi) & 1: continue
            npf_ += (size + (1 << 20) - 1) >> 20
            srd(A, sP, lo, lo + 1, size)
            for i in range((size + (1 << 20) - 1) >> 20):
                A(f"s_add_u32 s44, s43, {i << 20}")
                A(f"buffer_load_dwordx4 v[120:123], v14, s[{sP}:{sP+3}], s44 offen")
    if pfrows:
        A("s_lshl_b32 s43, s2, 2\ns_add_u32 s43, s43, s40\ns_lshl_b32 s43, s43, 10")
        for (lo, ld) in ((6, 3840), (12, 3072), (14, 3072)):
            srd(A, sP, lo, lo + 1, pfrows * ld)
            A(f"buffer_load_dwordx4 v[120:123], v14, s[{sP}:{sP+3}], s43 offen")
        if prefetch: npf_ += 3
        else: npf_ = 3
    if codepf:
        A(f"s_cmp_lt_u32 s40, 2\ns_cbranch_scc1 {name}_nocode\ns_cmp_ge_u32 s2, 32\ns_cbranch_scc1 {name}_nocode")
        A("s_getpc_b64 s[46:47]")
        A.label(f"{name}_pcref")
        A(f"s_add_u32 s46, s46, k1_kernel-{name}_pcref\ns_addc_u32 s47, s47, 0")
        A("s_and_b32 s44, s40, 1\ns_lshl_b32 s44, s44, 10\nv_add_u32 v13, s44, v14")
        for i in range(codepf):
            A(f"global_load_dwordx4 v[120:123], v13, s[46:47]")
            A("v_add_u32 v13, 2048, v13")
        A.label(f"{name}_nocode")
    npf = npf_ if (prefetch or pfrows) else 0
    A("s_cmp_ge_u32 s40, 2")
    A(f"s_cbranch_scc1 {name}_end")
    A("v_lshrrev_b32 v7, 5, v5\ns_mov_b32 s42, 40960\nv_mul_lo_u32 v7, v7, s42")
    A("v_and_b32 v8, 31, v5\nv_lshl_add_u32 v7, v8, 4, v7")
    A("v_lshl_add_u32 v7, v3, 9, v7")
    A(f"v_add_u32 v7, {WS_XN}, v7")
    A("v_mov_b32 v9, 0x3f803f80\nv_mov_b32 v10, 0\nv_mov_b32 v11, 0")
    A(f"s_waitcnt vmcnt({npf})")
    for i in range(20): A(f"v_dot2c_f32_bf16 v{10+(i&1)}, v{X+i}, v9")
    A("s_nop 3")
    A("v_add_f32 v10, v10, v11")
    def rowsum(r):
        for sh in (8, 4, 2, 1):
            A("s_nop 1")
            A(f"v_add_f32_dpp v{r}, v{r}, v{r} row_ror:{sh} row_mask:0xf bank_mask:0xf")
    rowsum(10)
    A(f"v_mul_f32 v10, {hex(f32bits(1.0/640))}, v10")
    A("v_cvt_pk_bf16_f32 v11, v10, v10\nv_and_b32 v11, 0xffff0000, v11")
    A("v_sub_f32 v10, v10, v11")
    A("v_mov_b32 v12, 0\nv_mov_b32 v13, 0")
    for i in range(20):
        A(f"v_lshlrev_b32 v{DD+2*i}, 16, v{X+i}\nv_and_b32 v{DD+2*i+1}, 0xffff0000, v{X+i}")
        A(f"v_sub_f32 v{DD+2*i}, v{DD+2*i}, v11\nv_sub_f32 v{DD+2*i+1}, v{DD+2*i+1}, v11")
        A(f"v_fmac_f32 v12, v{DD+2*i}, v{DD+2*i}\nv_fmac_f32 v13, v{DD+2*i+1}, v{DD+2*i+1}")
        A(f"v_cvt_pk_bf16_f32 v{XC+i}, v{DD+2*i}, v{DD+2*i+1}")
    A("v_add_f32 v12, v12, v13")
    rowsum(12)
    A(f"v_mul_f32 v12, {hex(f32bits(1.0/640))}, v12")
    A("v_fma_f32 v12, -v10, v10, v12")
    A("v_max_f32 v12, 0, v12")
    A("v_cvt_pk_bf16_f32 v12, v12, v12\nv_lshlrev_b32 v12, 16, v12")
    A(f"v_add_f32 v12, {hex(f32bits(1e-5))}, v12")
    A("v_cvt_pk_bf16_f32 v12, v12, v12\nv_lshlrev_b32 v12, 16, v12")
    A("v_sqrt_f32 v12, v12")
    A("s_nop 0")
    A("v_cvt_pk_bf16_f32 v12, v12, v12\nv_lshlrev_b32 v12, 16, v12")
    A("v_rcp_f32 v13, v12")
    A("s_nop 0")
    A("v_fma_f32 v10, -v12, v13, 1.0\nv_fma_f32 v13, v10, v13, v13")
    for i in range(20):
        A(f"v_lshlrev_b32 v{DD+2*i}, 16, v{XC+i}\nv_and_b32 v{DD+2*i+1}, 0xffff0000, v{XC+i}")
        A(f"v_mul_f32 v{DD+2*i}, v{DD+2*i}, v13\nv_mul_f32 v{DD+2*i+1}, v{DD+2*i+1}, v13")
        A(f"v_cvt_pk_bf16_f32 v{X+i}, v{DD+2*i}, v{DD+2*i+1}")
    for j in range(5):
        if j: A("v_add_u32 v7, 8192, v7")
        A(f"buffer_store_dwordx4 {v(X+4*j,4)}, v7, s[{sWS}:{sWS+3}], 0 offen" + {0: "", 1: " sc1", 2: " nt"}[xflag])
    A.label(f"{name}_end")
    rt_end(A, rt, 3, sWS, name)
    A("s_endpgm")
    return A.text(), kernel_desc(name, 128, 128)
```

```python
from common import *
import struct
def f32bits(x): return struct.unpack("<I", struct.pack("<f", x))[0]
NSLOT = 5
P1OFF = 10272
XOFF = 21536
SLOT = XOFF + 8192
K1_LDS = NSLOT * SLOT

def gen_k1(name="k1_kernel", rt=False, stamps=False, map_mode=0, perm=1, rotate=1, dma_gaps=(8, 9, 0, 1), wait_every=2, exp=0, Dahead=6, fuse=0, sleep0=32, sleep1=8, pf=0, hflag=1, h16=1, qflag=1):
    A = Asm()
    stamp = mk_stamp(A, stamps)
    A.raw(kernel_header(name))
    WF, XC = 24, 64
    RD, LP, XRD, XLP, VL16 = 72, 73, 74, 75, 76
    DMA = 77
    MF = 80
    LANE = 1
    sW, sWS = 28, 32
    sWAVE, sMB, sNB, sLDW, sDOFF, sSTEP, sWR, sRD, sC, sWRC = 40, 41, 42, 43, 44, 45, 47, 48, 49, 46
    sM0 = 52
    sTG, sPH, sXO, sTAU, sCOL, sXB = 56, 57, 58, 59, 65, 68
    sROW0, sHS, sHO, sHFM = 62, 63, 64, 66
    A("s_cmp_ge_u32 s2, 256")
    A(f"s_cbranch_scc1 {name}_end")
    rt_begin(A, rt)
    stamp(0)
    A("s_load_dwordx16 s[4:19], s[0:1], 0")
    A("s_load_dwordx4 s[20:23], s[0:1], 64")
    A(f"v_and_b32 v{LANE}, 63, v0")
    A("v_lshrrev_b32 v2, 6, v0")
    A("s_and_b32 s50, s2, 7\ns_lshr_b32 s51, s2, 3")
    A(f"v_readfirstlane_b32 s{sWAVE}, v2")
    if map_mode == 0:
        A(f"s_and_b32 s{sMB}, s50, 1\ns_lshl_b32 s{sMB}, s{sMB}, 3\ns_and_b32 s60, s51, 7\ns_add_u32 s{sMB}, s{sMB}, s60")
        A(f"s_lshr_b32 s{sNB}, s50, 1\ns_lshl_b32 s{sNB}, s{sNB}, 2\ns_lshr_b32 s60, s51, 3\ns_add_u32 s{sNB}, s{sNB}, s60")
    else:
        A(f"s_and_b32 s{sMB}, s50, 3\ns_lshl_b32 s{sMB}, s{sMB}, 2\ns_and_b32 s60, s51, 3\ns_add_u32 s{sMB}, s{sMB}, s60")
        A(f"s_lshr_b32 s{sNB}, s50, 2\ns_lshl_b32 s{sNB}, s{sNB}, 3\ns_lshr_b32 s60, s51, 2\ns_add_u32 s{sNB}, s{sNB}, s60")
    A(f"s_mov_b32 s69, s{sNB}")
    if perm:
        order = [0, 1, 6, 7, 2, 3, 8, 9, 4, 10, 11, 12, 5, 13, 14, 15] if map_mode == 0 else [0, 1, 2, 6, 7, 8, 9, 10, 3, 4, 5, 11, 12, 13, 14, 15]
        tab = sum(o << (4 * i) for i, o in enumerate(order))
        A(f"s_mov_b32 s60, {hex(tab & 0xffffffff)}\ns_mov_b32 s61, {hex(tab >> 32)}\ns_lshl_b32 s{sNB}, s{sNB}, 2\ns_lshr_b64 s[60:61], s[60:61], s{sNB}\ns_and_b32 s{sNB}, s60, 15")
    A(f"s_and_b32 s{sTG}, s{sWAVE}, 3\ns_lshr_b32 s{sPH}, s{sWAVE}, 2")
    A(f"s_lshl_b32 s{sROW0}, s{sMB}, 7\ns_lshl_b32 s60, s{sTG}, 5\ns_add_u32 s{sROW0}, s{sROW0}, s60")
    if rotate:
        A(f"s_add_u32 s60, s{sMB}, s{sNB}\ns_mul_i32 s60, s60, 3\ns_mul_i32 s61, s60, 205\ns_lshr_b32 s61, s61, 12\ns_mul_i32 s61, s61, 20\ns_sub_u32 s{sTAU}, s60, s61")
    else:
        A(f"s_mov_b32 s{sTAU}, 0")
    A(f"v_lshlrev_b32 v{VL16}, 4, v{LANE}")
    A(f"s_cmp_lt_u32 s{sNB}, 6")
    A(f"s_cselect_b32 s{sLDW}, 3840, 0\ns_cselect_b32 s60, 0, 3072\ns_add_u32 s{sLDW}, s{sLDW}, s60")
    A(f"s_mul_i32 s{sCOL}, s{sNB}, 640\ns_mul_i32 s51, s{sPH}, 320\ns_add_u32 s{sCOL}, s{sCOL}, s51")
    A(f"s_sub_u32 s60, s{sNB}, 6\ns_mul_i32 s60, s60, 320")
    A(f"s_cmp_lt_u32 s{sNB}, 6\ns_cselect_b32 s{sCOL}, s{sCOL}, s60")
    A(f"s_lshl_b32 s{sSTEP}, s{sLDW}, 5")
    A(f"s_mul_i32 s51, s{sTG}, 192")
    A("s_movk_i32 s60, 3277")
    A(f"s_mul_i32 s50, s{sPH}, {P1OFF}")
    A(f"s_mul_i32 s61, s{sTG}, 3072\ns_add_u32 s50, s50, s61")
    for j in range(3):
        A(f"v_add_u32 v5, s51, v{LANE}")
        if j: A(f"v_add_u32 v5, {j*64}, v5")
        A("v_mul_lo_u32 v6, v5, s60")
        A("v_lshrrev_b32 v6, 16, v6")
        A("v_mul_u32_u24 v7, 20, v6")
        A("v_sub_u32 v7, v5, v7")
        A(f"v_mul_lo_u32 v6, v6, s{sLDW}")
        A(f"v_lshl_add_u32 v{DMA+j}, v7, 4, v6")
        A(f"s_add_u32 s{sM0+j}, s50, {j*1024}")
        if j > 0:
            A(f"s_cmp_eq_u32 s{sTG}, 3")
            A(f"s_cselect_b32 s{sM0+j}, 20512, s{sM0+j}")
            A(f"s_cselect_b32 s61, 0x7ff00000, 0")
            A(f"v_or_b32 v{DMA+j}, s61, v{DMA+j}")
    A(f"s_lshl_b32 s60, s{sTG}, 11\ns_lshl_b32 s61, s{sPH}, 10\ns_add_u32 s60, s60, s61\ns_add_u32 s{sM0+3}, s60, {XOFF}")
    A(f"s_lshr_b32 s{sXB}, s{sROW0}, 5\ns_mul_i32 s{sXB}, s{sXB}, 40960\ns_add_u32 s{sXB}, s{sXB}, s61\ns_add_u32 s{sXB}, s{sXB}, {WS_XN}")
    A("s_waitcnt lgkmcnt(0)")
    srd(A, sWS, 22, 23, WS_SIZE)
    A(f"s_cmp_lt_u32 s{sNB}, 6")
    A(f"s_cbranch_scc0 {name}_gu_src")
    A(f"s_mov_b32 s{sW}, s6\ns_and_b32 s{sW+1}, s7, 0xffff\ns_mov_b32 s{sW+2}, {D*1920*2}")
    A(f"s_branch {name}_src_done")
    A.label(f"{name}_gu_src")
    A(f"s_cmp_eq_u32 s{sPH}, 0")
    A(f"s_cselect_b32 s{sW}, s12, s14\ns_cselect_b32 s{sW+1}, s13, s15")
    A(f"s_and_b32 s{sW+1}, s{sW+1}, 0xffff\ns_mov_b32 s{sW+2}, {D*F*2}")
    A.label(f"{name}_src_done")
    A(f"s_mov_b32 s{sW+3}, 0x00020000")
    def src_ops():
        return [f"s_mul_i32 s50, s{sTAU}, s{sSTEP}", f"s_add_u32 s50, s50, s{sCOL}", f"s_lshl_b32 s51, s{sTAU}, 11", f"s_add_u32 s51, s51, s{sXB}",
                f"s_add_u32 s{sTAU}, s{sTAU}, 1", f"s_cmp_ge_u32 s{sTAU}, 20", f"s_cselect_b32 s{sTAU}, 0, s{sTAU}"]
    def dma_i(j, slot_expr):
        m0 = f"s_add_u32 m0, s{sM0+j}, {slot_expr}"
        ld = f"buffer_load_dwordx4 v{DMA+j}, s[{sW}:{sW+3}], s50 offen lds" if j < 3 else f"buffer_load_dwordx4 v{VL16}, s[{sWS}:{sWS+3}], s51 offen lds"
        return m0, ld
    NPRE = NSLOT - 1
    def pre_chunk(c, which=(3, 0, 1, 2), src=True):
        if src:
            for o in src_ops(): A(o)
        for j in which:
            m0, ld = dma_i(j, c * SLOT)
            if j == 3 and fuse: ld = ld.replace(" lds", " sc1 lds")
            A(m0); A("s_nop 0"); A(ld)
    def setup_addrs():
        A(f"v_and_b32 v6, 31, v{LANE}\nv_lshrrev_b32 v7, 5, v{LANE}")
        A(f"v_cmp_lt_u32 s[{sHFM}:{sHFM+1}], 31, v{LANE}")
        A(f"v_and_b32 v21, 15, v{LANE}\nv_lshrrev_b32 v22, 2, v21\nv_lshl_add_u32 v22, v7, 3, v22")
        A(f"v_mul_u32_u24 v{LP}, 320, v22\nv_and_b32 v22, 3, v21\nv_lshl_add_u32 v{LP}, v22, 3, v{LP}")
        A(f"v_bfe_u32 v22, v{LANE}, 4, 1\nv_mul_u32_u24 v22, {P1OFF}, v22\nv_add_u32 v{LP}, v22, v{LP}")
        A(f"s_mul_i32 s60, s{sPH}, 160\nv_add_u32 v{LP}, s60, v{LP}\nv_mov_b32 v{RD}, v{LP}")
        A(f"s_lshl_b32 s60, s{sTG}, 11\ns_add_u32 s60, s60, {XOFF}\nv_add_u32 v{XLP}, s60, v{VL16}\nv_mov_b32 v{XRD}, v{XLP}")
        for i in range(80): A(f"v_accvgpr_write_b32 a{i}, 0")
        A(f"s_mov_b32 s{sC}, 0\ns_mov_b32 s{sRD}, 0\ns_mov_b32 s{sWR}, {NPRE*SLOT}\ns_mov_b32 s{sWRC}, {NPRE*SLOT}")
    if not fuse:
        pre_chunk(0)
        stamp(1)
        pre_chunk(1)
        setup_addrs()
        A("s_waitcnt vmcnt(4)")
        A("s_barrier")
    else:
        B = 88
        X, DD = B + 16, B + 40
        XCC = X
        sX, sP, sDBG = 24, 36, 72
        srd(A, sX, 4, 5, S * D * 2)
        srd(A, sDBG, 20, 21, 256)
        A(f"s_cmp_ge_u32 s{sWAVE}, 2")
        A(f"s_cbranch_scc1 {name}_noln1")
        A(f"v_and_b32 v{B+3}, 15, v{LANE}\nv_lshrrev_b32 v{B+4}, 4, v{LANE}")
        A(f"s_lshl_b32 s60, s{sMB}, 7\ns_lshl_b32 s61, s69, 3\ns_add_u32 s60, s60, s61\ns_lshl_b32 s61, s{sWAVE}, 2\ns_add_u32 s60, s60, s61")
        A(f"v_add_u32 v{B+5}, s60, v{B+4}\ns_movk_i32 s61, 1280\nv_mul_lo_u32 v{B+6}, v{B+5}, s61\nv_lshl_add_u32 v{B+6}, v{B+3}, 4, v{B+6}")
        for j in range(5):
            A(f"buffer_load_dwordx4 {v(X+4*j,4)}, v{B+6}, s[{sX}:{sX+3}], 0 offen offset:{j*256}")
        A.label(f"{name}_noln1")
        pre_chunk(0, which=(0, 1, 2)); A("s_mov_b32 s98, s51")
        pre_chunk(1, which=(0, 1, 2)); A("s_mov_b32 s99, s51")
        stamp(1)
        A(f"s_cmp_ge_u32 s{sWAVE}, 2")
        A(f"s_cbranch_scc1 {name}_noln2")
        A(f"v_lshrrev_b32 v{B+7}, 5, v{B+5}\ns_mov_b32 s61, 40960\nv_mul_lo_u32 v{B+7}, v{B+7}, s61")
        A(f"v_and_b32 v{B+8}, 31, v{B+5}\nv_lshl_add_u32 v{B+7}, v{B+8}, 4, v{B+7}\nv_lshl_add_u32 v{B+7}, v{B+3}, 9, v{B+7}\nv_add_u32 v{B+7}, {WS_XN}, v{B+7}")
        A(f"v_mov_b32 v{B+9}, 0x3f803f80\nv_mov_b32 v{B+10}, 0\nv_mov_b32 v{B+11}, 0")
        A("s_waitcnt vmcnt(6)")
        for i in range(20): A(f"v_dot2c_f32_bf16 v{B+10+(i&1)}, v{X+i}, v{B+9}")
        A("s_nop 3")
        A(f"v_add_f32 v{B+10}, v{B+10}, v{B+11}")
        def rowsum(r):
            for sh in (8, 4, 2, 1):
                A("s_nop 1")
                A(f"v_add_f32_dpp v{r}, v{r}, v{r} row_ror:{sh} row_mask:0xf bank_mask:0xf")
        rowsum(B + 10)
        A(f"v_mul_f32 v{B+10}, {hex(f32bits(1.0/640))}, v{B+10}")
        A(f"v_cvt_pk_bf16_f32 v{B+11}, v{B+10}, v{B+10}\nv_and_b32 v{B+11}, 0xffff0000, v{B+11}")
        A(f"v_sub_f32 v{B+10}, v{B+10}, v{B+11}")
        A(f"v_mov_b32 v{B+12}, 0\nv_mov_b32 v{B+13}, 0")
        for i in range(20):
            A(f"v_lshlrev_b32 v{DD+2*i}, 16, v{X+i}\nv_and_b32 v{DD+2*i+1}, 0xffff0000, v{X+i}")
            A(f"v_sub_f32 v{DD+2*i}, v{DD+2*i}, v{B+11}\nv_sub_f32 v{DD+2*i+1}, v{DD+2*i+1}, v{B+11}")
            A(f"v_fmac_f32 v{B+12}, v{DD+2*i}, v{DD+2*i}\nv_fmac_f32 v{B+13}, v{DD+2*i+1}, v{DD+2*i+1}")
            A(f"v_cvt_pk_bf16_f32 v{XCC+i}, v{DD+2*i}, v{DD+2*i+1}")
        A(f"v_add_f32 v{B+12}, v{B+12}, v{B+13}")
        rowsum(B + 12)
        r = B + 12
        A(f"v_mul_f32 v{r}, {hex(f32bits(1.0/640))}, v{r}")
        A(f"v_fma_f32 v{r}, -v{B+10}, v{B+10}, v{r}\nv_max_f32 v{r}, 0, v{r}")
        A(f"v_cvt_pk_bf16_f32 v{r}, v{r}, v{r}\nv_lshlrev_b32 v{r}, 16, v{r}")
        A(f"v_add_f32 v{r}, {hex(f32bits(1e-5))}, v{r}")
        A(f"v_cvt_pk_bf16_f32 v{r}, v{r}, v{r}\nv_lshlrev_b32 v{r}, 16, v{r}")
        A(f"v_sqrt_f32 v{r}, v{r}\ns_nop 0")
        A(f"v_cvt_pk_bf16_f32 v{r}, v{r}, v{r}\nv_lshlrev_b32 v{r}, 16, v{r}")
        A(f"v_rcp_f32 v{B+13}, v{r}\ns_nop 0")
        A(f"v_fma_f32 v{B+10}, -v{r}, v{B+13}, 1.0\nv_fma_f32 v{B+13}, v{B+10}, v{B+13}, v{B+13}")
        for i in range(20):
            A(f"v_lshlrev_b32 v{DD+2*i}, 16, v{XCC+i}\nv_and_b32 v{DD+2*i+1}, 0xffff0000, v{XCC+i}")
            A(f"v_mul_f32 v{DD+2*i}, v{DD+2*i}, v{B+13}\nv_mul_f32 v{DD+2*i+1}, v{DD+2*i+1}, v{B+13}")
            A(f"v_cvt_pk_bf16_f32 v{X+i}, v{DD+2*i}, v{DD+2*i+1}")
        for j in range(5):
            if j: A(f"v_add_u32 v{B+7}, 8192, v{B+7}")
            A(f"buffer_store_dwordx4 {v(X+4*j,4)}, v{B+7}, s[{sWS}:{sWS+3}], 0 offen sc1")
        setup_addrs()
        A("s_waitcnt vmcnt(0)")
        A(f"s_branch {name}_lnbar")
        A.label(f"{name}_noln2")
        setup_addrs()
        A(f"s_mul_i32 s60, s2, 6\ns_add_u32 s60, s60, s{sWAVE}\ns_sub_u32 s60, s60, 2\ns_lshl_b32 s60, s60, 10")
        srd(A, sP, 16, 17, F * D * 2)
        A(f"buffer_load_dwordx4 v[100:103], v{VL16}, s[{sP}:{sP+3}], s60 offen")
        A(f"s_add_u32 s61, s60, {1536*1024}")
        A(f"buffer_load_dwordx4 v[100:103], v{VL16}, s[{sP}:{sP+3}], s61 offen")
        srd(A, sP, 8, 9, D * D * 2)
        A(f"buffer_load_dwordx4 v[100:103], v{VL16}, s[{sP}:{sP+3}], s60 offen")
        A(f"s_cmp_eq_u32 s60, 0\ns_cbranch_scc0 {name}_nz")
        A(f"v_lshlrev_b32 v104, 8, v{LANE}\nv_add_u32 v104, {WS_FLAG}, v104\nv_mov_b32 v105, 0")
        A(f"buffer_store_dword v105, v104, s[{sWS}:{sWS+3}], 0 offen")
        A.label(f"{name}_nz")
        A.label(f"{name}_lnbar")
        A("s_barrier")
        A(f"s_cmp_eq_u32 s{sWAVE}, 7")
        A(f"s_cbranch_scc0 {name}_lnjoin")
        A(f"v_mov_b32 v104, 0\nv_mov_b32 v105, 1\ns_lshl_b32 s61, s{sMB}, 4\ns_add_u32 s50, s61, s69\ns_mov_b32 s60, 0")
        A("s_mov_b64 exec, 1")
        A(f"buffer_store_byte v105, v104, s[{sDBG}:{sDBG+3}], s50 offen sc1")
        if sleep0: A(f"s_sleep {sleep0}")
        A.label(f"{name}_poll")
        A(f"buffer_load_dwordx4 v[108:111], v104, s[{sDBG}:{sDBG+3}], s61 offen sc1")
        A("s_add_u32 s60, s60, 1")
        A("s_waitcnt vmcnt(0)")
        A("v_and_b32 v108, v108, v109\nv_and_b32 v110, v110, v111\nv_and_b32 v108, v108, v110")
        A("s_nop 0")
        A("v_readfirstlane_b32 s50, v108")
        A("s_nop 3")
        A("s_cmp_eq_u32 s50, 0x01010101")
        A(f"s_cbranch_scc1 {name}_go")
        A(f"s_sleep {sleep1}")
        A("s_cmp_lt_u32 s60, 0x40000")
        A(f"s_cbranch_scc1 {name}_poll")
        A.label(f"{name}_go")
        A("s_mov_b64 exec, -1")
        A.label(f"{name}_lnjoin")
        A("s_barrier")
        A("s_mov_b32 s51, s98"); pre_chunk(0, which=(3,), src=False)
        A("s_mov_b32 s51, s99"); pre_chunk(1, which=(3,), src=False)
        A("s_waitcnt vmcnt(1)")
        A("s_barrier")
    stamp(2)
    def rd_ops(m):
        ks, tp = divmod(m % 10, 5)
        buf = WF + 4 * (m % 10)
        return [f"ds_read_b64_tr_b16 {v(buf+2*j,2)}, v{RD} offset:{(16*ks+4*j)*320 + tp*32}" for j in range(2)]
    for m in range(Dahead):
        for o in rd_ops(m): A(o)
    A(f"ds_read_b128 {v(XC,4)}, v{XRD}\nds_read_b128 {v(XC+4,4)}, v{XRD} offset:1024")
    for c in range(2, NPRE): pre_chunk(c)
    if pf and not fuse:
        A(f"s_lshl_b32 s60, s2, 3\ns_add_u32 s60, s60, s{sWAVE}\ns_lshl_b32 s60, s60, 10")
        srd(A, 36, 16, 17, F * D * 2)
        A(f"buffer_load_dwordx4 v[16:19], v{VL16}, s[36:39], s60 offen")
        srd(A, 36, 8, 9, D * D * 2)
        A(f"buffer_load_dwordx4 v[16:19], v{VL16}, s[36:39], s60 offen")
    A("s_mov_b32 s50, 0x40000000\ns_mov_b32 s51, 0x40000000")
    A("s_waitcnt lgkmcnt(0)")
    bar_gap = 10 - Dahead - 1
    fill = {g: [] for g in range(10)}
    fill[bar_gap] += [f"s_waitcnt vmcnt({4*(NPRE-2)})", "s_barrier",
                      f"s_mov_b32 s{sWR}, s{sWRC}", f"s_mov_b32 s{sWRC}, s{sRD}",
                      f"s_add_u32 s{sRD}, s{sRD}, {SLOT}", f"s_cmp_ge_u32 s{sRD}, {NSLOT*SLOT}", f"s_cselect_b32 s{sRD}, 0, s{sRD}",
                      f"v_add_u32 v{RD}, s{sRD}, v{LP}", f"v_add_u32 v{XRD}, s{sRD}, v{XLP}"]
    so = src_ops()
    fill[bar_gap + 1] += so[:4]
    fill[bar_gap + 2] += so[4:] + [f"s_cmp_lt_u32 s{sC}, {20-NPRE}", "s_cselect_b32 s50, s50, 0x40000000", "s_cselect_b32 s51, s51, 0x40000000"]
    assert all(g > bar_gap + 2 or g < bar_gap for g in dma_gaps)
    for j in range(4):
        if exp & 1: continue
        m0, ld = dma_i(j, f"s{sWR}")
        if j == 3 and fuse: ld = ld.replace(" lds", " sc1 lds")
        fill[dma_gaps[j]] = [("m0", m0), ("dma", ld)] + fill[dma_gaps[j]]
    fill[9] += [f"s_add_u32 s{sC}, s{sC}, 1", f"s_cmp_lt_u32 s{sC}, 20", f"s_cbranch_scc1 {name}_loop"]
    xrd = {4: f"ds_read_b128 {v(XC,4)}, v{XRD}", 9: f"ds_read_b128 {v(XC+4,4)}, v{XRD} offset:1024"}
    assert bar_gap < 4
    stream = []
    for m in range(10):
        ks, tp = divmod(m, 5)
        stream.append(("mfma", m, f"v_mfma_f32_32x32x16_bf16 {a(16*tp,16)}, {v(WF+4*m,4)}, {v(XC+4*ks,4)}, {a(16*tp,16)}"))
        m0s = [o for o in fill[m] if isinstance(o, tuple) and o[0] == "m0"]
        if m0s: stream.append(("other", None, m0s[0][1]))
        for o in rd_ops(m + Dahead): stream.append(("lds", ("w", (m + Dahead) % 10), o))
        if m in xrd: stream.append(("lds", ("x", 0 if m == 4 else 1), xrd[m]))
        seen = 0
        for o in fill[m]:
            if isinstance(o, tuple):
                if o[0] == "m0":
                    seen += 1
                    if seen == 1: continue
                    stream.append(("other", None, o[1])); stream.append(("other", None, "s_nop 0"))
                else: stream.append(("other", None, o[1]))
            elif exp & 2 and o == "s_barrier": continue
            else: stream.append(("other", None, o))
    A(".p2align 6")
    A.label(f"{name}_loop")
    L = len(stream); full = stream + stream
    def need_n(pos, tag):
        p = max(q for q in range(pos) if full[q][0] == "lds" and full[q][1] == tag)
        return sum(1 for q in range(p + 1, pos) if full[q][0] == "lds")
    for q, (kind, tag, txt) in enumerate(stream):
        if kind == "mfma" and tag % wait_every == 0:
            ns = []
            for mm in range(tag, min(tag + wait_every, 10)): ns += [need_n(L + q, ("w", mm)), need_n(L + q, ("x", mm // 5))]
            A(f"s_waitcnt lgkmcnt({min(min(ns), 15)})")
        A(txt)
    A("s_waitcnt lgkmcnt(0)")
    stamp(3)
    A(f"s_cmp_lt_u32 s{sNB}, 6")
    A(f"s_cbranch_scc0 {name}_epi_h")
    A(f"s_cmp_lt_u32 s{sNB}, 2")
    A(f"s_cselect_b32 s60, {hex(f32bits((20 ** -0.5) * 1.4426950408889634))}, 1.0")
    A(f"v_mov_b32 v{MF}, s60\nv_mov_b32 v{MF+1}, s60")
    A(f"s_lshr_b32 s50, s{sROW0}, 5\ns_mul_i32 s50, s50, {QKV_T}\ns_add_u32 s50, s50, {WS_QKV}")
    A(f"s_mul_i32 s51, s{sNB}, {40*512}\ns_add_u32 s50, s50, s51\ns_mul_i32 s51, s{sPH}, {10*512}\ns_add_u32 s50, s50, s51")
    QF_ = {0: "", 1: " sc1", 2: " nt"}[qflag]
    q = 0
    for p in range(2):
        for tp in range(5):
            R4 = 56 + 4 * (q % 2)
            E = 32 + 8 * (q % 2); q += 1
            base = tp * 16 + 8 * p
            for i in range(8): A(f"v_accvgpr_read_b32 v{E+i}, a{base+i}")
            for i in range(4): A(f"v_pk_mul_f32 {v(E+2*i,2)}, {v(E+2*i,2)}, {v(MF,2)}")
            for i in range(4): A(f"v_cvt_pk_bf16_f32 v{R4+i}, v{E+2*i}, v{E+2*i+1}")
            A("s_nop 1")
            A(f"v_permlane32_swap_b32 v{R4}, v{R4+2}\nv_permlane32_swap_b32 v{R4+1}, v{R4+3}")
            A("s_nop 0")
            A(f"buffer_store_dwordx4 {v(R4,4)}, v{VL16}, s[{sWS}:{sWS+3}], s50 offen offset:{(tp%4)*1024}{QF_}")
            if tp == 3: A("s_add_u32 s50, s50, 4096")
        if p == 0: A(f"s_add_u32 s50, s50, {20*512 - 4096}")
    A(f"s_branch {name}_end")
    A.label(f"{name}_epi_h")
    A(f"s_lshr_b32 s50, s{sROW0}, 5\ns_mul_i32 s50, s50, 98304\ns_add_u32 s50, s50, {WS_H}")
    A(f"s_sub_u32 s51, s{sNB}, 6\ns_mul_i32 s51, s51, 10240\ns_add_u32 s50, s50, s51")
    A(f"s_mul_i32 s51, s{sPH}, 5120\ns_add_u32 s50, s50, s51")
    A("v_lshlrev_b32 v2, 4, v6\nv_lshl_add_u32 v2, v7, 3, v2")
    A(f"s_cmp_eq_u32 s{sNB}, 15\ns_cselect_b32 s61, s{sPH}, 0")
    HF_ = {0: "", 1: " sc1", 2: " nt"}[hflag]
    q = 0
    for tp in range(5):
        if tp == 1:
            A(f"s_cmp_eq_u32 s61, 1\ns_cbranch_scc1 {name}_end")
        R4 = 56 + 4 * (tp % 2)
        for a2 in range(2):
            E = 32 + 12 * (q % 2); q += 1
            bg, bu = tp * 16 + 4 * a2, tp * 16 + 8 + 4 * a2
            for i in range(4): A(f"v_accvgpr_read_b32 v{E+i}, a{bg+i}")
            for i in range(4): A(f"v_accvgpr_read_b32 v{E+4+i}, a{bu+i}")
            for i in range(4): A(f"v_max_f32 v{E+i}, 0, v{E+i}")
            A(f"v_pk_mul_f32 {v(E,2)}, {v(E,2)}, {v(E+4,2)}\nv_pk_mul_f32 {v(E+2,2)}, {v(E+2,2)}, {v(E+6,2)}")
            if h16:
                A(f"v_cvt_pk_bf16_f32 v{R4+2*a2}, v{E}, v{E+1}\nv_cvt_pk_bf16_f32 v{R4+2*a2+1}, v{E+2}, v{E+3}")
            else:
                A(f"v_cvt_pk_bf16_f32 v{E+8}, v{E}, v{E+1}\nv_cvt_pk_bf16_f32 v{E+9}, v{E+2}, v{E+3}")
                A(f"buffer_store_dwordx2 {v(E+8,2)}, v2, s[{sWS}:{sWS+3}], s50 offen offset:{(tp%4)*1024 + a2*512}{HF_}")
        if h16:
            A("s_nop 1")
            A(f"v_permlane32_swap_b32 v{R4}, v{R4+2}\nv_permlane32_swap_b32 v{R4+1}, v{R4+3}")
            A("s_nop 0")
            A(f"buffer_store_dwordx4 {v(R4,4)}, v{VL16}, s[{sWS}:{sWS+3}], s50 offen offset:{(tp%4)*1024}{HF_}")
        if tp == 3: A("s_add_u32 s50, s50, 4096")
    A.label(f"{name}_end")
    rt_end(A, rt, 0, sWS, name)
    stamp_dump(A, stamps, 4, sWS, 8, name)
    A("s_waitcnt vmcnt(0)")
    A("s_endpgm")
    return A.text(), kernel_desc(name, *((88 + 80, 88) if not fuse else (248, 168)))
```

```python
from common import *
import struct
def f32bits(x): return struct.unpack("<I", struct.pack("<f", x))[0]

LT = 3136
KVSLOT = 8 * LT
GW_BASE = 3 * KVSLOT
GW_STAGE = 5120
GW_WAVE = 4 * GW_STAGE
K2_LDS = GW_BASE + 4 * GW_WAVE
RED_BASE = GW_BASE

def gemm_lane_setup(A, LANE, sLDWrow, VD, VRD):
    A("s_movk_i32 s60, 3277")
    A("s_movk_i32 s61, 1280")
    for i in range(5):
        A(f"v_add_u32 v5, {i*64}, v{LANE}")
        A("v_mul_lo_u32 v6, v5, s60")
        A("v_lshrrev_b32 v6, 16, v6")
        A("v_mul_u32_u24 v7, 20, v6")
        A("v_sub_u32 v7, v5, v7")
        A("v_mul_lo_u32 v6, v6, s61")
        A(f"v_lshl_add_u32 v{VD+i}, v7, 4, v6")
    A(f"v_and_b32 v5, 15, v{LANE}")
    A(f"v_lshrrev_b32 v6, 5, v{LANE}")
    A("v_lshrrev_b32 v7, 2, v5")
    A("v_lshl_add_u32 v7, v6, 3, v7")
    A(f"v_mul_u32_u24 v{VRD}, 320, v7")
    A("v_and_b32 v7, 3, v5")
    A(f"v_lshl_add_u32 v{VRD}, v7, 3, v{VRD}")
    A(f"v_bfe_u32 v7, v{LANE}, 4, 1")
    A(f"v_lshl_add_u32 v{VRD}, v7, 5, v{VRD}")

def gen_k2(name="k2_kernel", rt=False, stamps=False, force_fallback=False, no_gemm=False, abl=0, prio=0, fuse=1, gstamps=0, sleep0=16, sleep1=8):
    A = Asm()
    A.raw(kernel_header(name))
    LANE = 1
    sWS, sX, sWD = 24, 28, 32
    sWAVE, sHEAD, sQB, sT, sNQ = 40, 41, 42, 43, 44
    def stamp(i):
        if not stamps: return
        A(f"s_memtime s[70:71]")
        A("s_waitcnt lgkmcnt(0)")
        A(f"s_mov_b32 s{72+i}, s70")
    def stamp_out(n, lab):
        if not stamps: return
        A("s_waitcnt vmcnt(0)")
        stamp(n)
        A(f"s_mul_i32 s50, s2, 12\ns_add_u32 s50, s50, s{sWAVE}\ns_lshl_b32 s50, s50, 6\ns_add_u32 s50, s50, {WS_END}")
        A("v_mov_b32 v2, 0")
        for i in range(n + 1):
            A(f"v_mov_b32 v3, s{72+i}")
            A(f"buffer_store_dword v3, v2, s[{sWS}:{sWS+3}], s50 offen offset:{4*i}")
    A("s_cmp_ge_u32 s2, 256")
    A(f"s_cbranch_scc1 {name}_end")
    rt_begin(A, rt)
    stamp(0)
    A("s_load_dwordx2 s[4:5], s[0:1], 0")
    A("s_load_dwordx2 s[6:7], s[0:1], 48")
    A("s_load_dwordx2 s[8:9], s[0:1], 72")
    A("s_load_dwordx2 s[10:11], s[0:1], 16")
    A("s_load_dwordx4 s[12:15], s[0:1], 56")
    A(f"v_and_b32 v{LANE}, 63, v0")
    A("v_lshrrev_b32 v2, 6, v0")
    A("s_and_b32 s50, s2, 7\ns_lshr_b32 s51, s2, 3")
    A(f"v_readfirstlane_b32 s{sWAVE}, v2")
    A(f"s_and_b32 s{sHEAD}, s51, 3\ns_lshl_b32 s52, s50, 2\ns_add_u32 s{sHEAD}, s{sHEAD}, s52")
    A(f"s_lshr_b32 s{sQB}, s51, 2")
    A(f"s_and_b32 s{sT}, s51, 7\ns_lshl_b32 s52, s50, 3\ns_add_u32 s{sT}, s{sT}, s52")
    A(f"s_lshr_b32 s{sNQ}, s51, 3")
    A("s_waitcnt lgkmcnt(0)")
    srd(A, sWS, 8, 9, WS_SIZE)
    A(f"s_cmp_ge_u32 s{sWAVE}, 8")
    A(f"s_cbranch_scc1 {name}_gemm")
    Q1, Q2, Q1B, Q2B, K1, K2, VLO, VHI = 8, 12, 16, 20, 24, 28, 32, 36
    P, PB, O, OB, S0, S1 = 40, 48, 56, 72, 88, 104
    aK1, aK2, aV = 120, 121, 122
    lK1, lK2 = 126, 127
    TQ, HF, TMP = 128, 129, 130
    LK1, LK2, LV = 135, 136, 137
    sSLOT, sC, sHFM, sQT, sKH, sQG, sPAR, sHB = 45, 46, 48, 47, 55, 56, 57, 58
    A(f"v_and_b32 v{TQ}, 31, v{LANE}")
    A(f"v_lshrrev_b32 v{HF}, 5, v{LANE}")
    A(f"v_cmp_lt_u32 s[{sHFM}:{sHFM+1}], 31, v{LANE}")
    A(f"s_and_b32 s{sQG}, s{sWAVE}, 3\ns_lshr_b32 s{sKH}, s{sWAVE}, 2")
    A(f"s_lshl_b32 s{sQT}, s{sQB}, 3\ns_lshl_b32 s50, s{sQG}, 1\ns_add_u32 s{sQT}, s{sQT}, s50")
    A(f"s_xor_b32 s52, s{sKH}, 1\ns_add_u32 s52, s52, s{sQT}\ns_add_u32 s{sQT}, s{sQT}, s{sKH}")
    A(f"s_and_b32 s{sPAR}, s{sHEAD}, 1\ns_mul_i32 s{sHB}, s{sHEAD}, 5\ns_lshr_b32 s{sHB}, s{sHB}, 1\ns_lshl_b32 s{sHB}, s{sHB}, 9\ns_add_u32 s{sHB}, s{sHB}, {WS_QKV}")
    A(f"s_lshl_b32 s50, s{sPAR}, 9")
    A(f"v_lshlrev_b32 v{lK1}, 4, v{LANE}\nv_add_u32 v{lK1}, s50, v{lK1}")
    A(f"s_cmp_eq_u32 s{sPAR}, 0\ns_cselect_b32 s50, 1024, 8")
    A(f"v_lshlrev_b32 v{lK2}, 4, v{TQ}\nv_add_u32 v{lK2}, s50, v{lK2}")
    A(f"s_mul_i32 s51, s{sQT}, {QKV_T}\ns_add_u32 s51, s51, s{sHB}\ns_mul_i32 s52, s52, {QKV_T}\ns_add_u32 s52, s52, s{sHB}")
    A(f"buffer_load_dwordx4 {v(Q1,4)}, v{lK1}, s[{sWS}:{sWS+3}], s51 offen")
    A(f"buffer_load_dwordx2 {v(Q2,2)}, v{lK2}, s[{sWS}:{sWS+3}], s51 offen")
    A(f"buffer_load_dwordx4 {v(Q1B,4)}, v{lK1}, s[{sWS}:{sWS+3}], s52 offen")
    A(f"buffer_load_dwordx2 {v(Q2B,2)}, v{lK2}, s[{sWS}:{sWS+3}], s52 offen")
    A(f"s_add_u32 s53, s{sHB}, {80*512}")
    A(f"buffer_load_dwordx4 {v(K1,4)}, v{lK1}, s[{sWS}:{sWS+3}], s53 offen")
    A(f"buffer_load_dwordx2 {v(K2,2)}, v{lK2}, s[{sWS}:{sWS+3}], s53 offen")
    A(f"v_and_b32 v2, 15, v{LANE}\nv_and_b32 v3, 3, v2\nv_lshrrev_b32 v2, 2, v2")
    A(f"v_bfe_u32 v4, v{LANE}, 4, 1")
    A("v_lshl_add_u32 v3, v4, 2, v3")
    A("v_cmp_lt_u32 vcc, 4, v3")
    A(f"v_add_u32 v3, s{sPAR}, v3")
    A("v_lshrrev_b32 v4, 1, v3\nv_and_b32 v3, 1, v3")
    A(f"v_lshl_add_u32 v2, v{HF}, 2, v2\nv_lshl_add_u32 v2, v4, 2, v2")
    A("v_lshlrev_b32 v5, 9, v4\nv_lshl_add_u32 v5, v3, 3, v5\nv_add_u32 v5, 1536, v5")
    A(f"s_mul_i32 s50, s{sKH}, {LT}")
    A("v_mov_b32 v7, 3072")
    for mj in range(4):
        A(f"v_add_u32 v6, {8*mj}, v2\nv_and_b32 v6, 31, v6\nv_lshl_add_u32 v6, v6, 4, v5")
        A(f"v_cndmask_b32 v6, v6, v7, vcc\nv_add_u32 v{LV+mj}, s50, v6\nv_mov_b32 v{aV+mj}, v{LV+mj}")
    A(f"v_add_u32 v{LK1}, s50, v{lK1}\nv_add_u32 v{LK2}, s50, v{lK2}")
    A(f"v_mov_b32 v{aK1}, v{LK1}\nv_mov_b32 v{aK2}, v{LK2}")
    A(f"v_mov_b32 v{K2+2}, 0x3f80\nv_mov_b32 v{K2+3}, 0")
    for q2 in (Q2, Q2B): A(f"v_mov_b32 v{q2+2}, 0\nv_mov_b32 v{q2+3}, 0")
    for i in range(32): A(f"v_mov_b32 v{O+i}, 0")
    for i in range(4): A(f"v_mov_b32 v{VHI+i}, 0\nv_mov_b32 v{PB+4+i}, 0")
    A("s_waitcnt vmcnt(0)")
    for q2 in (Q2, Q2B):
        A(f"v_cndmask_b32 v{q2}, v{q2}, v{q2+3}, s[{sHFM}:{sHFM+1}]")
        A(f"v_cndmask_b32 v{q2+1}, v{q2+1}, v{q2+3}, s[{sHFM}:{sHFM+1}]")
    A("s_nop 1")
    M = lambda d, x, y, c: A(f"v_mfma_f32_32x32x16_bf16 {v(d,16)}, {v(x,4)}, {v(y,4)}, {c}")
    M(S0, K1, Q1, "0"); M(S1, K1, Q1B, "0"); M(S0, K2, Q2, v(S0,16)); M(S1, K2, Q2B, v(S1,16))
    A("s_nop 15\ns_nop 3")
    for (Sx, q2, tm) in ((S0, Q2, TMP), (S1, Q2B, TMP + 2)):
        A(f"v_max3_f32 v{tm}, v{Sx}, v{Sx+1}, v{Sx+2}")
        for i in range(3, 15, 2): A(f"v_max3_f32 v{tm}, v{tm}, v{Sx+i}, v{Sx+i+1}")
        A(f"v_max_f32 v{tm}, v{tm}, v{Sx+15}")
        A(f"v_mov_b32 v{tm+1}, v{tm}")
        A("s_nop 1")
        A(f"v_permlane32_swap_b32 v{tm}, v{tm+1}")
        A("s_nop 1")
        A(f"v_max_f32 v{tm}, v{tm}, v{tm+1}")
        A(f"v_sub_f32 v{tm}, 0, v{tm}")
        A(f"v_cvt_pk_bf16_f32 v{tm}, v{tm}, v{q2+3}")
        A(f"v_cndmask_b32 v{q2+2}, v{tm}, v{q2+3}, s[{sHFM}:{sHFM+1}]")
    if prio: A(f"s_setprio {prio}")
    A("s_barrier")
    stamp(1)
    aVLO = aVHI = None
    def vrd(dst, areg, tile, m):
        return [f"ds_read_b64_tr_b16 {v(dst+2*j,2)}, v{aV+2*m+j} offset:{tile*LT}" for j in range(2)]
    A(f"ds_read_b128 {v(K1,4)}, v{aK1}")
    A(f"ds_read_b64 {v(K2,2)}, v{aK2}")
    for o in vrd(VLO, aVLO, 0, 0): A(o)
    A(f"s_mov_b32 s{sSLOT}, {KVSLOT}")
    A(f"s_mov_b32 s{sC}, 0")
    A("s_waitcnt lgkmcnt(0)")
    M(S0, K1, Q1, "0"); M(S0, K2, Q2, v(S0,16))
    A("s_nop 15")
    A(".p2align 6")
    A.label(f"{name}_aloop")
    def expcvt(Sx, i0, p0, Px=None):
        Px = P if Px is None else Px
        for i in range(4): A(f"v_exp_f32 v{Sx+i0+i}, v{Sx+i0+i}")
        A(f"v_cvt_pk_bf16_f32 v{Px+p0}, v{Sx+i0}, v{Sx+i0+1}")
        A(f"v_cvt_pk_bf16_f32 v{Px+p0+1}, v{Sx+i0+2}, v{Sx+i0+3}")
    for i in range(4):
        nt_ = 2 * ((i + 1) % 4)
        if i == 3:
            if not abl & 2: A("s_barrier")
            A(f"v_add_u32 v{aK1}, s{sSLOT}, v{LK1}\nv_add_u32 v{aK2}, s{sSLOT}, v{LK2}\nv_add_u32 v{aV}, s{sSLOT}, v{LV}\nv_add_u32 v{aV+1}, s{sSLOT}, v{LV+1}")
        M(S1, K1, Q1B, "0")
        A(f"ds_read_b128 {v(K1,4)}, v{aK1} offset:{nt_*LT}")
        expcvt(S0, 0, 0)
        M(OB, VHI, PB + 4, v(OB,16))
        for o in vrd(VHI, aVHI, 2 * i, 1): A(o)
        expcvt(S0, 4, 2)
        M(S1, K2, Q2B, v(S1,16))
        A(f"ds_read_b64 {v(K2,2)}, v{aK2} offset:{nt_*LT}")
        expcvt(S0, 8, 4)
        A("s_waitcnt lgkmcnt(4)")
        M(O, VLO, P, v(O,16))
        expcvt(S0, 12, 6)
        A("s_waitcnt lgkmcnt(3)")
        M(S0, K1, Q1, "0")
        expcvt(S1, 0, 0, PB)
        A("s_waitcnt lgkmcnt(1)")
        M(O, VHI, P + 4, v(O,16))
        expcvt(S1, 4, 2, PB)
        A("s_waitcnt lgkmcnt(0)")
        M(S0, K2, Q2, v(S0,16))
        expcvt(S1, 8, 4, PB)
        M(OB, VLO, PB, v(OB,16))
        for o in vrd(VLO, aVLO, nt_, 0): A(o)
        expcvt(S1, 12, 6, PB)
    A(f"v_add_u32 v{aV+2}, s{sSLOT}, v{LV+2}\nv_add_u32 v{aV+3}, s{sSLOT}, v{LV+3}")
    A(f"s_add_u32 s{sSLOT}, s{sSLOT}, {KVSLOT}\ns_cmp_ge_u32 s{sSLOT}, {3*KVSLOT}\ns_cselect_b32 s{sSLOT}, 0, s{sSLOT}")
    A(f"s_add_u32 s{sC}, s{sC}, 1\ns_cmp_lt_u32 s{sC}, 8")
    A(f"s_cbranch_scc1 {name}_aloop")
    M(OB, VHI, PB + 4, v(OB,16))
    stamp(2)
    A(f"s_mul_i32 s50, s{sWAVE}, 3072\ns_xor_b32 s52, s{sWAVE}, 4\ns_mul_i32 s52, s52, 3072")
    A(f"v_lshlrev_b32 v2, 4, v{LANE}\nv_add_u32 v3, s52, v2\nv_add_u32 v2, s50, v2")
    A("s_waitcnt lgkmcnt(0)")
    A("s_nop 7")
    for q in range(3): A(f"ds_write_b128 v2, {v(OB+4*q,4)} offset:{q*1024}")
    A("s_waitcnt lgkmcnt(0)")
    A("s_barrier")
    for q in range(3): A(f"ds_read_b128 {v(OB+4*q,4)}, v3 offset:{q*1024}")
    A("s_waitcnt lgkmcnt(0)")
    for i in range(12): A(f"v_add_f32 v{O+i}, v{O+i}, v{OB+i}")
    A(f"v_mov_b32 v{TMP}, v{O+8}\nv_mov_b32 v{O+12}, v{O+8}")
    A("s_nop 1")
    A(f"v_permlane32_swap_b32 v{TMP}, v{O+12}")
    A("s_nop 1")
    A(f"v_cndmask_b32 v{TMP}, v{O+12}, v{O+8}, s[{sHFM}:{sHFM+1}]")
    A(f"v_cmp_le_f32 vcc, {hex(f32bits(2.0**-60))}, v{TMP}")
    A(f"v_cmp_ge_f32 s[50:51], {hex(0)}, v{TMP}" if False else f"s_mov_b32 s52, {hex(f32bits(2.0**60))}")
    A(f"v_cmp_ge_f32 s[50:51], s52, v{TMP}")
    A("s_nop 1")
    A("s_and_b64 vcc, vcc, s[50:51]")
    A("s_cmp_eq_u64 vcc, exec")
    if force_fallback: A("s_cmp_eq_u32 s2, 0x7fffffff")
    A(f"s_cbranch_scc0 {name}_fallback")
    A.label(f"{name}_aepi")
    A(f"v_rcp_f32 v{TMP}, v{TMP}")
    A(f"s_mul_i32 s50, s{sQT}, 40960\ns_add_u32 s50, s50, {WS_O}")
    A(f"s_mul_i32 s51, s{sHEAD}, 20")
    A(f"v_lshl_add_u32 v2, v{HF}, 2, s51")
    for qd in range(3):
        if qd == 1: A("v_add_u32 v2, 8, v2")
        if qd == 2: A("v_add_u32 v2, 8, v2")
        A("v_lshrrev_b32 v3, 3, v2\nv_lshlrev_b32 v3, 9, v3")
        A("v_and_b32 v4, 4, v2\nv_lshl_add_u32 v3, v4, 1, v3")
        A(f"v_lshl_add_u32 v3, v{TQ}, 4, v3")
        for i in range(4): A(f"v_mul_f32 v{O+4*qd+i}, v{O+4*qd+i}, v{TMP}")
        A(f"v_cvt_pk_bf16_f32 v{P+2*qd}, v{O+4*qd}, v{O+4*qd+1}\nv_cvt_pk_bf16_f32 v{P+2*qd+1}, v{O+4*qd+2}, v{O+4*qd+3}")
        if qd == 2:
            A(f"s_andn2_b64 exec, exec, s[{sHFM}:{sHFM+1}]")
        A(f"buffer_store_dwordx2 {v(P+2*qd,2)}, v3, s[{sWS}:{sWS+3}], s50 offen" + (" sc1" if fuse else ""))
    A("s_mov_b64 exec, -1")
    if fuse:
        A("s_waitcnt vmcnt(0)")
        A("s_barrier")
    stamp_out(3, None)
    A(f"s_branch {name}_end")
    A.label(f"{name}_fallback")
    M, AL, VA0, VA1 = TMP + 1, TMP + 2, TMP + 3, TMP + 4
    A(f"v_mov_b32 v{Q2+2}, 0")
    for i in range(16): A(f"v_mov_b32 v{O+i}, 0")
    A(f"v_mov_b32 v{M}, 0xff7fffff")
    A(f"v_lshrrev_b32 v2, 2, v{TQ}\nv_min_u32 v2, 4, v2\nv_add_u32 v2, s{sPAR}, v2")
    A(f"v_lshrrev_b32 v3, 1, v2\nv_lshlrev_b32 v{VA0}, 9, v3\nv_and_b32 v2, 1, v2\nv_lshl_add_u32 v{VA0}, v2, 3, v{VA0}")
    A(f"v_and_b32 v2, 3, v{TQ}\nv_lshl_add_u32 v{VA0}, v2, 1, v{VA0}\nv_lshl_add_u32 v{VA0}, v{HF}, 6, v{VA0}")
    A(f"v_add_u32 v{VA0}, {80*512}, v{VA0}")
    A(f"v_cmp_lt_u32 s[60:61], 19, v{TQ}\nv_cmp_eq_u32 vcc, 0, v2\nv_mov_b32 v3, 0x3f803f80\ns_nop 1\nv_cndmask_b32 v{LV}, 0, v3, vcc")
    A(f"s_add_u32 s50, s{sHB}, {80*512}")
    A("s_mov_b32 s54, 0")
    A.label(f"{name}_floop")
    A(f"buffer_load_dwordx4 {v(K1,4)}, v{lK1}, s[{sWS}:{sWS+3}], s50 offen")
    A(f"buffer_load_dwordx2 {v(K2,2)}, v{lK2}, s[{sWS}:{sWS+3}], s50 offen")
    for m in range(2):
        for e in range(8):
            A(f"buffer_load_ushort v{S1+8*m+e}, v{VA0}, s[{sWS}:{sWS+3}], s50 offen offset:{(16*m + 8*(e>>2) + (e&3))*16}")
    A("s_waitcnt vmcnt(16)")
    A(f"v_mfma_f32_32x32x16_bf16 {v(S0,16)}, {v(K1,4)}, {v(Q1,4)}, 0")
    A(f"v_mfma_f32_32x32x16_bf16 {v(S0,16)}, {v(K2,4)}, {v(Q2,4)}, {v(S0,16)}")
    A("s_nop 15\ns_nop 3")
    A(f"v_max3_f32 v{AL}, v{S0}, v{S0+1}, v{M}")
    for i in range(2, 16, 2): A(f"v_max3_f32 v{AL}, v{AL}, v{S0+i}, v{S0+i+1}")
    A(f"v_mov_b32 v{VA1}, v{AL}")
    A("s_nop 1")
    A(f"v_permlane32_swap_b32 v{AL}, v{VA1}")
    A("s_nop 1")
    A(f"v_max_f32 v{VA1}, v{AL}, v{VA1}")
    A(f"v_sub_f32 v{AL}, v{M}, v{VA1}")
    A(f"v_exp_f32 v{AL}, v{AL}")
    A(f"v_mov_b32 v{M}, v{VA1}")
    for i in range(16): A(f"v_sub_f32 v{S0+i}, v{S0+i}, v{M}")
    for i in range(16): A(f"v_mul_f32 v{O+i}, v{O+i}, v{AL}")
    for g in range(4): expcvt(S0, 4 * g, 2 * g)
    A("s_waitcnt vmcnt(0)")
    for m in range(2):
        for e in range(4):
            A(f"v_lshl_or_b32 v{(VLO if m == 0 else VHI)+e}, v{S1+8*m+2*e+1}, 16, v{S1+8*m+2*e}")
            A(f"v_cndmask_b32 v{(VLO if m == 0 else VHI)+e}, v{(VLO if m == 0 else VHI)+e}, v{LV}, s[60:61]")
    A("s_nop 1")
    A(f"v_mfma_f32_32x32x16_bf16 {v(O,16)}, {v(VLO,4)}, {v(P,4)}, {v(O,16)}")
    A(f"v_mfma_f32_32x32x16_bf16 {v(O,16)}, {v(VHI,4)}, {v(P+4,4)}, {v(O,16)}")
    A("s_nop 15\ns_nop 3")
    A(f"s_add_u32 s50, s50, {QKV_T}")
    A("s_add_u32 s54, s54, 1\ns_cmp_lt_u32 s54, 64")
    A(f"s_cbranch_scc1 {name}_floop")
    A(f"v_cndmask_b32 v{TMP}, v{O+12}, v{O+8}, s[{sHFM}:{sHFM+1}]")
    A(f"s_branch {name}_aepi")
    A.label(f"{name}_gemm")
    gst = mk_stamp(A, gstamps)
    gst(0)
    ACC, WFR, HFR = 8, 88, 108
    VD, VRD, VL16, VX, XR, VRD2 = 148, 153, 154, 155, 156, 166
    OFR = 108
    sG, sKV, sKVL, sWO, sHO2, sLB, sI, sSL = 45, 46, 47, 48, 49, 52, 53, 54
    srd(A, sX, 4, 5, S * D * 2)
    srd(A, sWD, 6, 7, F * D * 2)
    A(f"s_sub_u32 s{sG}, s{sWAVE}, 8")
    A(f"v_lshlrev_b32 v{VL16}, 4, v{LANE}")
    VKV = 144
    A(f"s_mul_i32 s{sKV}, s{sHEAD}, 5\ns_lshr_b32 s{sKV}, s{sKV}, 1\ns_lshl_b32 s{sKV}, s{sKV}, 9\ns_add_u32 s{sKV}, s{sKV}, {WS_QKV + 80*512}")
    A(f"s_mul_i32 s50, s{sG}, {2*QKV_T}\ns_add_u32 s{sKV}, s{sKV}, s50\ns_mul_i32 s{sKVL}, s{sG}, {2*LT}")
    A(f"v_and_b32 v2, 31, v{LANE}\nv_lshrrev_b32 v3, 5, v{LANE}")
    A(f"v_cmp_lt_u32 vcc, 31, v{LANE}")
    A(f"v_lshlrev_b32 v4, 4, v2\nv_add_u32 v5, 1024, v4\nv_add_u32 v6, {80*512}, v4\nv_cndmask_b32 v{VKV}, v5, v6, vcc")
    A("v_lshl_add_u32 v5, v3, 2, 4\nv_sub_u32 v5, v2, v5\nv_and_b32 v5, 31, v5")
    A(f"v_lshlrev_b32 v5, 4, v5\nv_lshl_add_u32 v5, v3, 9, v5\nv_add_u32 v{VKV+1}, {80*512 + 512}, v5")
    def kv_dma(slot_sreg):
        for tl in range(2):
            A(f"s_add_u32 s50, s{sKV}, {tl*QKV_T}")
            for part in range(3):
                A(f"s_add_u32 m0, s{slot_sreg}, {tl*LT + part*1024}")
                A("s_nop 0")
                A(f"buffer_load_dwordx4 v{[VL16, VKV, VKV+1][part]}, s[{sWS}:{sWS+3}], s50 offen lds")
        A(f"s_add_u32 s{sKV}, s{sKV}, {8*QKV_T}")
    A(f"s_cmp_eq_u32 s{sG}, 0\ns_cbranch_scc0 {name}_noones")
    A(f"v_mul_u32_u24 v4, {LT}, v{LANE}\nv_add_u32 v4, 3072, v4\nv_mov_b32 v6, 0x3f80\nv_mov_b32 v7, 0")
    A("s_mov_b64 exec, 0xffffff")
    A("ds_write_b64 v4, v[6:7]")
    A("s_mov_b64 exec, -1")
    A.label(f"{name}_noones")
    A(f"s_mov_b32 s{sSL}, s{sKVL}")
    kv_dma(sSL)
    gemm_lane_setup(A, LANE, None, VD, VRD)
    A(f"s_mul_i32 s{sLB}, s{sG}, {GW_WAVE}\ns_add_u32 s{sLB}, s{sLB}, {GW_BASE}")
    A(f"v_add_u32 v{VRD}, s{sLB}, v{VRD}")
    A(f"s_mul_i32 s{sWO}, s{sG}, {24*20480}\ns_mul_i32 s50, s{sNQ}, 320\ns_add_u32 s{sWO}, s{sWO}, s50")
    A(f"s_mul_i32 s{sHO2}, s{sT}, 96\ns_mul_i32 s50, s{sG}, 24\ns_add_u32 s{sHO2}, s{sHO2}, s50\ns_lshl_b32 s{sHO2}, s{sHO2}, 10\ns_add_u32 s{sHO2}, s{sHO2}, {WS_H}")
    def issue_stage(st, sw, sh):
        for i in range(5):
            A(f"s_add_u32 m0, s{sLB}, {st*GW_STAGE + i*1024}")
            A("s_nop 0")
            A(f"buffer_load_dwordx4 v{VD+i}, s[{sWD}:{sWD+3}], s{sw} offen lds")
        A(f"buffer_load_dwordx4 {v(HFR+4*st,4)}, v{VL16}, s[{sWS}:{sWS+3}], s{sh} offen")
        A(f"s_add_u32 s{sWO}, s{sWO}, 20480\ns_add_u32 s{sHO2}, s{sHO2}, 1024")
    for i in range(80): A(f"v_mov_b32 v{ACC+i}, 0")
    A(f"s_mov_b32 s{sI}, 0")
    A(f"s_add_u32 s{sSL}, s{sKVL}, {KVSLOT}")
    A("s_waitcnt vmcnt(0) lgkmcnt(0)")
    A("s_barrier")
    for st in range(3): issue_stage(st, sWO, sHO2)
    A(".p2align 6")
    A.label(f"{name}_gloop")
    kv_dma(sSL)
    A(f"s_add_u32 s{sSL}, s{sSL}, {KVSLOT}\ns_cmp_ge_u32 s{sSL}, {3*KVSLOT}\ns_cselect_b32 s50, {3*KVSLOT}, 0\ns_sub_u32 s{sSL}, s{sSL}, s50")
    for k4 in range(4):
        if abl & 1: continue
        A(f"s_waitcnt vmcnt({18 if k4 < 3 else 12})")
        for t in range(5):
            for j in range(2):
                A(f"ds_read_b64_tr_b16 {v(WFR+4*t+2*j,2)}, v{VRD} offset:{k4*GW_STAGE + j*1280 + t*64}")
        if k4 >= 1:
            A(f"s_cmp_lt_u32 s{sI}, 5\ns_cselect_b32 s50, s{sWO}, 0x40000000\ns_cselect_b32 s51, s{sHO2}, 0x40000000")
            issue_stage((k4 + 3) % 4, 50, 51)
        else:
            issue_stage((k4 + 3) % 4, sWO, sHO2)
        for t in range(5):
            A(f"s_waitcnt lgkmcnt({8-2*t})")
            if not no_gemm:
                A(f"v_mfma_f32_32x32x16_bf16 {v(ACC+16*t,16)}, {v(WFR+4*t,4)}, {v(HFR+4*k4,4)}, {v(ACC+16*t,16)}")
    A("s_waitcnt vmcnt(24)" if not abl & 1 else "s_waitcnt vmcnt(0)")
    A(f"s_cmp_eq_u32 s{sI}, 5\ns_cbranch_scc0 {name}_gnw")
    A("s_waitcnt vmcnt(0)")
    A.label(f"{name}_gnw")
    if not abl & 2: A("s_barrier")
    A(f"s_add_u32 s{sI}, s{sI}, 1\ns_cmp_lt_u32 s{sI}, 6")
    A(f"s_cbranch_scc1 {name}_gloop")
    kv_dma(sSL)
    A(f"v_and_b32 v2, 31, v{LANE}\nv_lshrrev_b32 v3, 5, v{LANE}")
    A(f"s_lshl_b32 s50, s{sT}, 5\nv_add_u32 v2, s50, v2\ns_movk_i32 s50, 1280\nv_mul_lo_u32 v{VX}, v2, s50")
    A(f"v_lshl_add_u32 v{VX}, v3, 3, v{VX}")
    A(f"s_mul_i32 s50, s{sNQ}, 320\ns_lshl_b32 s51, s{sG}, 4\ns_add_u32 s50, s50, s51")
    for t in range(5):
        A(f"buffer_load_dwordx2 {v(XR+2*t,2)}, v{VX}, s[{sX}:{sX+3}], s50 offen offset:{t*64}")
    def red_write():
        for aq in range(4):
            A(f"s_cmp_eq_u32 s{sG}, {aq}")
            A(f"s_cbranch_scc1 {name}_rw{aq}")
            A(f"s_sub_u32 s50, s{sG}, {aq+1}\ns_and_b32 s50, s50, 3\ns_mul_i32 s50, s50, 5120\ns_add_u32 s50, s50, {RED_BASE + aq*15360}")
            A(f"v_add_u32 v2, s50, v{VL16}")
            for t in range(5):
                A(f"ds_write_b128 v2, {v(ACC+16*t+4*aq,4)} offset:{t*1024}")
            A.label(f"{name}_rw{aq}")
        for aq in range(4):
            A(f"s_cmp_eq_u32 s{sG}, {aq}")
            A(f"s_cbranch_scc0 {name}_rm{aq}")
            for t in range(5):
                for i in range(4): A(f"v_mov_b32 v{WFR+4*t+i}, v{ACC+16*t+4*aq+i}")
            A.label(f"{name}_rm{aq}")
    def red_read():
        A(f"s_mul_i32 s50, s{sG}, 15360\ns_add_u32 s50, s50, {RED_BASE}\nv_add_u32 v2, s50, v{VL16}")
        for sl in range(3):
            for t in range(5):
                A(f"ds_read_b128 {v(ACC+20*sl+4*t,4)}, v2 offset:{sl*5120+t*1024}")
    def red_add():
        for t in range(5):
            for hlf in range(2):
                A(f"v_lshlrev_b32 v3, 16, v{XR+2*t+hlf}\nv_and_b32 v4, 0xffff0000, v{XR+2*t+hlf}")
                A(f"v_add_f32 v{WFR+4*t+2*hlf}, v{WFR+4*t+2*hlf}, v3\nv_add_f32 v{WFR+4*t+2*hlf+1}, v{WFR+4*t+2*hlf+1}, v4")
        for sl in range(3):
            A(f"s_waitcnt lgkmcnt({10-5*sl})")
            for i in range(20): A(f"v_add_f32 v{WFR+i}, v{WFR+i}, v{ACC+20*sl+i}")
    if not fuse:
        red_write()
        A("s_waitcnt vmcnt(5) lgkmcnt(0)")
        if not abl & 2: A("s_barrier")
        red_read()
        A("s_waitcnt vmcnt(0) lgkmcnt(0)")
        if not abl & 2: A("s_barrier")
        red_add()
        A(f"s_mul_i32 s50, s{sT}, 20\ns_mul_i32 s51, s{sNQ}, 5\ns_add_u32 s50, s50, s51\ns_lshl_b32 s50, s50, 2\ns_add_u32 s50, s50, s{sG}\ns_lshl_b32 s50, s50, 10\ns_add_u32 s50, s50, {WS_Y}")
        for t in range(5):
            A(f"buffer_store_dwordx4 {v(WFR+4*t,4)}, v{VL16}, s[{sWS}:{sWS+3}], s50 offen")
            if t < 4: A("s_add_u32 s50, s50, 4096")
        A("s_barrier")
    else:
        sWOs, sOUT, sDBG = 36, 56, 60
        srd(A, sWOs, 10, 11, D * D * 2)
        srd(A, sOUT, 12, 13, S * D * 2)
        A(f"v_add_u32 v{VX}, s50, v{VX}")
        A(f"s_mul_i32 s{sWO}, s{sG}, {10*20480}\ns_mul_i32 s50, s{sNQ}, 320\ns_add_u32 s{sWO}, s{sWO}, s50")
        A(f"s_mul_i32 s55, s{sG}, {GW_STAGE}\ns_add_u32 s55, s55, {2*KVSLOT}")
        A(f"v_subrev_u32 v{VRD2}, s{sLB}, v{VRD}\nv_add_u32 v{VRD2}, s55, v{VRD2}")
        def st_of(k):
            if k == 4 or k == 9: return 55, VRD2, 0
            return sLB, VRD, (k if k < 4 else k - 5) * GW_STAGE
        def wo_stage(k):
            base, _, off = st_of(k)
            for i in range(5):
                A(f"s_add_u32 m0, s{base}, {off + i*1024}")
                A("s_nop 0")
                A(f"buffer_load_dwordx4 v{VD+i}, s[{sWOs}:{sWOs+3}], s{sWO} offen lds")
            A(f"s_add_u32 s{sWO}, s{sWO}, 20480")
        for k in range(4): wo_stage(k)
        A("s_waitcnt vmcnt(25)")
        A("s_barrier")
        wo_stage(4)
        A(f"s_lshl_b32 s51, s{sQB}, 10\ns_lshr_b32 s50, s{sHEAD}, 3\ns_lshl_b32 s50, s50, 8\ns_add_u32 s65, s51, s50\ns_add_u32 s65, s65, {WS_FLAG}")
        A(f"s_lshr_b32 s51, s{sT}, 3\ns_lshl_b32 s51, s51, 10\ns_lshl_b32 s50, s{sG}, 8\ns_add_u32 s51, s51, s50\ns_add_u32 s51, s51, {WS_FLAG}")
        A(f"s_mul_i32 s{sHO2}, s{sT}, 40\ns_mul_i32 s50, s{sG}, 10\ns_add_u32 s{sHO2}, s{sHO2}, s50\ns_lshl_b32 s{sHO2}, s{sHO2}, 10\ns_add_u32 s{sHO2}, s{sHO2}, {WS_O}")
        A("v_mov_b32 v2, 0\nv_mov_b32 v4, 1")
        A("s_mov_b32 s64, 0")
        A("s_barrier")
        A("s_barrier")
        gst(1)
        A("s_barrier")
        gst(2)
        A(f"s_cmp_eq_u32 s{sG}, 0")
        A(f"s_cbranch_scc0 {name}_nosig")
        A("s_mov_b64 exec, 1")
        A(f"buffer_atomic_add v4, v2, s[{sWS}:{sWS+3}], s65 offen sc1")
        A("s_mov_b64 exec, -1")
        A.label(f"{name}_nosig")
        gst(3)
        if sleep0: A(f"s_sleep {sleep0}")
        A("s_mov_b64 exec, 1")
        A.label(f"{name}_poll")
        A(f"buffer_load_dword v3, v2, s[{sWS}:{sWS+3}], s51 offen sc1")
        A("s_add_u32 s64, s64, 1")
        A("s_waitcnt vmcnt(0)")
        A("v_readfirstlane_b32 s50, v3")
        A("s_nop 3")
        A("s_cmp_ge_u32 s50, 8")
        A(f"s_cbranch_scc1 {name}_go")
        A(f"s_sleep {sleep1}")
        A("s_cmp_lt_u32 s64, 0x40000")
        A(f"s_cbranch_scc1 {name}_poll")
        A.label(f"{name}_go")
        A("s_mov_b64 exec, -1")
        gst(4)
        for k in range(10):
            A(f"buffer_load_dwordx4 {v(OFR+4*k,4)}, v{VL16}, s[{sWS}:{sWS+3}], s{sHO2} offen offset:{(k%4)*1024} sc1")
            if k % 4 == 3: A(f"s_add_u32 s{sHO2}, s{sHO2}, 4096")
        order = [("o", k) for k in range(10)]
        for k in range(10):
            need = [order.index(("o", k))] + ([order.index(("d", k))] if k >= 5 else [])
            n = sum(1 if o[0] == "o" else 5 for o in order[max(need) + 1:])
            _, rd, off = st_of(k)
            if k >= 5: A(f"s_waitcnt vmcnt({n})")
            for t in range(5):
                for j in range(2):
                    A(f"ds_read_b64_tr_b16 {v(WFR+4*t+2*j,2)}, v{rd} offset:{off + j*1280 + t*64}")
            if k < 5:
                A("s_waitcnt lgkmcnt(0)")
                wo_stage(k + 5); order.append(("d", k + 5))
                n += 5
                A(f"s_waitcnt vmcnt({n})")
            if k == 0: gst(5)
            for t in range(5):
                if k >= 5: A(f"s_waitcnt lgkmcnt({8-2*t})")
                A(f"v_mfma_f32_32x32x16_bf16 {v(ACC+16*t,16)}, {v(WFR+4*t,4)}, {v(OFR+4*k,4)}, {v(ACC+16*t,16)}")
        gst(6)
        A("s_barrier")
        A("s_nop 7")
        red_write()
        A("s_waitcnt lgkmcnt(0)")
        A("s_barrier")
        red_read()
        red_add()
        for t in range(5):
            A(f"v_cvt_pk_bf16_f32 v{OFR+2*t}, v{WFR+4*t}, v{WFR+4*t+1}\nv_cvt_pk_bf16_f32 v{OFR+2*t+1}, v{WFR+4*t+2}, v{WFR+4*t+3}")
            A(f"buffer_store_dwordx2 {v(OFR+2*t,2)}, v{VX}, s[{sOUT}:{sOUT+3}], 0 offen offset:{t*64}")
        gst(7)
        stamp_dump(A, gstamps, 8, sWS, 12, name)
    stamp_out(1, None)
    A.label(f"{name}_end")
    rt_end(A, rt, 1, sWS, name)
    A("s_waitcnt vmcnt(0)")
    A("s_endpgm")
    return A.text(), kernel_desc(name, 168, 168)
```

```python
from common import *
import struct
def f32bits(x): return struct.unpack("<I", struct.pack("<f", x))[0]

NSLOT = 6
P1OFF = 10272
SLOT = 21536
XC_BASE = NSLOT * SLOT
ST_BASE = XC_BASE + 16384
K1_LDS = ST_BASE + 2048
XS_BASE = 2 * SLOT

def gen_k1(name="k1_kernel", rt=False, Dahead=6, map_mode=0, stamps=False, exp=0, rotate=True, prefetch=True, plan=2, wait_every=2, wmode=0, fine=0, nt=0, perm=1):
    dma_gaps, cent_gaps = {0: ((9, 0, 1), (4, 5, 6)), 1: ((0, 1, 2), (4, 5, 6)), 2: ((8, 9, 0), (4, 5, 6)), 3: ((9, 0, 1), (5, 6, 7)), 4: ((5, 7, 9), (4, 6, 6)), 5: ((9, 0, 1), (4, 4, 5))}[plan]
    A = Asm()
    def stamp(i):
        if not stamps: return
        A(f"s_memtime s[70:71]")
        A("s_waitcnt lgkmcnt(0)")
        A(f"s_mov_b32 s{72+i}, s70")
    fcount = [0]
    NT = ' nt' if nt else ''
    def fstamp():
        if not fine: return
        A("s_memtime s[70:71]")
        A("s_waitcnt lgkmcnt(0)")
        A(f"s_mov_b32 s{90+fcount[0]}, s70"); fcount[0] += 1
    A.raw(kernel_header(name))
    WF = 24
    X = 64
    XC = 144
    T = 152
    MF, RD, LP, XRD, XWR = 160, 161, 162, 163, 164
    DMA = 165
    SX, SXX = 168, 169
    XO = 8
    LANE = 1
    sX, sW, sWS = 24, 28, 32
    sWAVE, sMB, sNB, sLDW, sDOFF, sSTEP, sWR, sRD, sC, sXI = 40, 41, 42, 43, 44, 45, 47, 48, 49, 46
    sM0 = 52
    sTG, sPH = 55, 56
    sOWN0, sOWN1 = 57, 58
    sWRC = 68
    sROT, sCOL, sTAU = 69, 65, 89
    sXB = 59
    sROW0 = 62
    sHS, sHO = 63, 64
    sHFM = 66

    A(f"s_cmp_ge_u32 s2, 256")
    A(f"s_cbranch_scc1 {name}_end")
    rt_begin(A, rt)
    stamp(0)
    A("s_load_dwordx16 s[4:19], s[0:1], 0")
    A("s_load_dwordx4 s[20:23], s[0:1], 64")
    A(f"v_and_b32 v{LANE}, 63, v0")
    A("v_lshrrev_b32 v2, 6, v0")
    A("s_and_b32 s50, s2, 7")
    A("s_lshr_b32 s51, s2, 3")
    A(f"v_readfirstlane_b32 s{sWAVE}, v2")
    if map_mode == 0:
        A(f"s_and_b32 s{sMB}, s50, 1\ns_lshl_b32 s{sMB}, s{sMB}, 3\ns_and_b32 s60, s51, 7\ns_add_u32 s{sMB}, s{sMB}, s60")
        A(f"s_lshr_b32 s{sNB}, s50, 1\ns_lshl_b32 s{sNB}, s{sNB}, 2\ns_lshr_b32 s60, s51, 3\ns_add_u32 s{sNB}, s{sNB}, s60")
    else:
        A(f"s_and_b32 s{sMB}, s50, 3\ns_lshl_b32 s{sMB}, s{sMB}, 2\ns_and_b32 s60, s51, 3\ns_add_u32 s{sMB}, s{sMB}, s60")
        A(f"s_lshr_b32 s{sNB}, s50, 2\ns_lshl_b32 s{sNB}, s{sNB}, 3\ns_lshr_b32 s60, s51, 2\ns_add_u32 s{sNB}, s{sNB}, s60")
    if perm:
        order = [0, 1, 6, 7, 2, 3, 8, 9, 4, 10, 11, 12, 5, 13, 14, 15] if map_mode == 0 else [0, 1, 2, 6, 7, 8, 9, 10, 3, 4, 5, 11, 12, 13, 14, 15]
        tab = sum(o << (4 * i) for i, o in enumerate(order))
        A(f"s_mov_b32 s60, {hex(tab & 0xffffffff)}\ns_mov_b32 s61, {hex(tab >> 32)}\ns_lshl_b32 s{sNB}, s{sNB}, 2\ns_lshr_b64 s[60:61], s[60:61], s{sNB}\ns_and_b32 s{sNB}, s60, 15")
    A(f"s_and_b32 s{sTG}, s{sWAVE}, 3\ns_lshr_b32 s{sPH}, s{sWAVE}, 2")
    A(f"s_lshl_b32 s{sROW0}, s{sMB}, 7\ns_lshl_b32 s60, s{sTG}, 5\ns_add_u32 s{sROW0}, s{sROW0}, s60")
    A(f"s_add_u32 s60, s{sMB}, s{sNB}\ns_mul_i32 s61, s60, 52\ns_lshr_b32 s61, s61, 8\ns_mul_i32 s61, s61, 5\ns_sub_u32 s{sROT}, s60, s61")
    if not rotate: A(f"s_mov_b32 s{sROT}, 0")
    sR = 84
    A(f"s_lshl_b32 s{sR}, s{sROT}, 8")
    for r in range(1, 5):
        A(f"s_add_u32 s{sR+r}, s{sR+r-1}, 256\ns_cmp_ge_u32 s{sR+r}, 1280\ns_cselect_b32 s60, 1280, 0\ns_sub_u32 s{sR+r}, s{sR+r}, s60")
    A(f"v_lshrrev_b32 v2, 3, v{LANE}")
    A(f"v_add_u32 v3, s{sROW0}, v2")
    A("s_movk_i32 s60, 1280")
    A("v_mul_lo_u32 v3, v3, s60")
    A(f"s_lshl_b32 s60, s{sPH}, 7")
    A("v_add_u32 v3, s60, v3")
    A(f"v_and_b32 v4, 7, v{LANE}")
    A(f"v_lshrrev_b32 v5, 4, v{LANE}")
    A("v_xor_b32 v4, v4, v5")
    A("v_lshl_add_u32 v8, v4, 4, v3")
    A("v_xor_b32 v4, 4, v4")
    A("v_lshl_add_u32 v9, v4, 4, v3")
    A("v_add_u32 v9, 10240, v9")
    A("v_add_u32 v10, 20480, v8")
    A("v_add_u32 v11, 20480, v9")
    A(f"s_mul_i32 s83, s{sWAVE}, 12288\ns_add_u32 s83, s83, {XS_BASE}")
    A("s_waitcnt lgkmcnt(0)")
    fstamp()
    srd(A, sX, 4, 5, S * D * 2)
    def xdma(r):
        for u in range(4):
            A(f"s_add_u32 m0, s83, {(r%3)*4096 + u*1024}")
            A("s_nop 0")
            A(f"buffer_load_dwordx4 v{8+u}, s[{sX}:{sX+3}], s{sR+r} offen lds")
    for r in range(3): xdma(r)
    fstamp()
    srd(A, sWS, 22, 23, WS_SIZE)
    A(f"s_cmp_lt_u32 s{sNB}, 6")
    A(f"s_cbranch_scc0 {name}_gu_src")
    A(f"s_mov_b32 s{sW}, s6\ns_and_b32 s{sW+1}, s7, 0xffff\ns_mov_b32 s{sW+2}, {D*1920*2}")
    A(f"s_movk_i32 s{sLDW}, 3840")
    A(f"s_mul_i32 s{sDOFF}, s{sNB}, 640\ns_mul_i32 s51, s{sPH}, 320\ns_add_u32 s{sDOFF}, s{sDOFF}, s51")
    A(f"s_branch {name}_src_done")
    A.label(f"{name}_gu_src")
    A(f"s_cmp_eq_u32 s{sPH}, 0")
    A(f"s_cselect_b32 s{sW}, s12, s14\ns_cselect_b32 s{sW+1}, s13, s15")
    A(f"s_and_b32 s{sW+1}, s{sW+1}, 0xffff\ns_mov_b32 s{sW+2}, {D*F*2}")
    A(f"s_movk_i32 s{sLDW}, 3072")
    A(f"s_sub_u32 s{sDOFF}, s{sNB}, 6\ns_mul_i32 s{sDOFF}, s{sDOFF}, 320")
    A.label(f"{name}_src_done")
    A(f"s_mov_b32 s{sW+3}, 0x00020000")
    A(f"s_mov_b32 s{sCOL}, s{sDOFF}")
    A(f"s_lshl_b32 s{sTAU}, s{sROT}, 2")
    def doff_ops():
        return [f"s_lshr_b32 s60, s{sTAU}, 2", "s_lshl_b32 s60, s60, 7", f"s_and_b32 s61, s{sTAU}, 1", "s_lshl_b32 s61, s61, 6", "s_add_u32 s60, s60, s61",
                f"s_and_b32 s61, s{sTAU}, 2", "s_lshl_b32 s61, s61, 4", "s_add_u32 s60, s60, s61", f"s_mul_i32 s60, s60, s{sLDW}", f"s_add_u32 s{sDOFF}, s{sCOL}, s60",
                f"s_add_u32 s{sTAU}, s{sTAU}, 1", f"s_cmp_ge_u32 s{sTAU}, 20", f"s_cselect_b32 s{sTAU}, 0, s{sTAU}"]
    A(f"s_mul_i32 s51, s{sTG}, 192")
    A("s_movk_i32 s60, 3277")
    A(f"s_mul_i32 s50, s{sPH}, {P1OFF}")
    A(f"s_mul_i32 s61, s{sTG}, 3072\ns_add_u32 s50, s50, s61")
    for j in range(3):
        A(f"v_add_u32 v5, s51, v{LANE}")
        if j: A(f"v_add_u32 v5, {j*64}, v5")
        A("v_mul_lo_u32 v6, v5, s60")
        A("v_lshrrev_b32 v6, 16, v6")
        A("v_mul_u32_u24 v7, 20, v6")
        A("v_sub_u32 v7, v5, v7")
        A(f"v_mul_lo_u32 v6, v6, s{sLDW}")
        A(f"v_lshl_add_u32 v{DMA+j}, v7, 4, v6")
        A(f"s_add_u32 s{sM0+j}, s50, {j*1024}")
        if j > 0:
            A(f"s_cmp_eq_u32 s{sTG}, 3")
            A(f"s_cselect_b32 s{sM0+j}, 20512, s{sM0+j}")
            A(f"s_cselect_b32 s61, 0x7ff00000, 0")
            A(f"v_or_b32 v{DMA+j}, s61, v{DMA+j}")
    def dma_chunk_static(c):
        for o in doff_ops(): A(o)
        for j in range(3):
            A(f"s_add_u32 m0, s{sM0+j}, {c*SLOT}")
            A("s_nop 0")
            A(f"buffer_load_dwordx4 v{DMA+j}, s[{sW}:{sW+3}], s{sDOFF} offen lds")
    for c in range(2): dma_chunk_static(c)
    stamp(1)
    A(f"v_and_b32 v6, 31, v{LANE}")
    A(f"v_lshrrev_b32 v7, 5, v{LANE}")
    A("v_bfe_u32 v5, v6, 1, 3\nv_xor_b32 v5, v5, v7")
    A("v_lshlrev_b32 v20, 7, v6\nv_add_u32 v20, s83, v20")
    for sp in range(4):
        A(f"v_xor_b32 v4, {2*sp}, v5\nv_lshl_add_u32 v{16+sp}, v4, 4, v20")
    A(f"v_cmp_lt_u32 s[{sHFM}:{sHFM+1}], 31, v{LANE}")
    A(f"v_and_b32 v21, 15, v{LANE}")
    A("v_lshrrev_b32 v22, 2, v21")
    A("v_lshl_add_u32 v22, v7, 3, v22")
    A(f"v_mul_u32_u24 v{LP}, 320, v22")
    A("v_and_b32 v22, 3, v21")
    A(f"v_lshl_add_u32 v{LP}, v22, 3, v{LP}")
    A(f"v_bfe_u32 v22, v{LANE}, 4, 1")
    A(f"v_mul_u32_u24 v22, {P1OFF}, v22")
    A(f"v_add_u32 v{LP}, v22, v{LP}")
    A(f"s_mul_i32 s60, s{sPH}, 160")
    A(f"v_add_u32 v{LP}, s60, v{LP}")
    A(f"v_mov_b32 v{RD}, v{LP}")
    A(f"s_lshl_b32 s60, s{sTG}, 12\ns_add_u32 s60, s60, {XC_BASE}")
    A(f"v_lshlrev_b32 v{XRD}, 4, v{LANE}")
    A(f"v_add_u32 v{XRD}, s60, v{XRD}")
    A("v_mov_b32 v21, 0x3f803f80")
    for i in range(8): A(f"v_mov_b32 v{T+i}, 0")
    for i in range(80): A(f"v_accvgpr_write_b32 a{i}, 0")
    for r in range(5):
        if r == 0: fstamp()
        A(f"s_waitcnt vmcnt({[14, 14, 14, 4, 0][r]})")
        fstamp()
        for sp in range(4):
            A(f"ds_read_b128 {v(X+16*r+4*sp,4)}, v{16+sp} offset:{(r%3)*4096}")
        if r > 0:
            for i in range(16):
                A(f"v_dot2c_f32_bf16 v{T+(i&3)}, v{X+16*(r-1)+i}, v21")
                A(f"v_dot2c_f32_bf16 v{T+4+(i&3)}, v{X+16*(r-1)+i}, v{X+16*(r-1)+i}")
        A("s_waitcnt lgkmcnt(0)")
        if r < 2: xdma(r + 3)
    for i in range(16):
        A(f"v_dot2c_f32_bf16 v{T+(i&3)}, v{X+64+i}, v21")
        A(f"v_dot2c_f32_bf16 v{T+4+(i&3)}, v{X+64+i}, v{X+64+i}")
    A(f"s_lshl_b32 s60, s{sTG}, 9\ns_add_u32 s60, s60, {ST_BASE}")
    A("v_lshlrev_b32 v22, 3, v6\nv_add_u32 v22, s60, v22")
    A(f"s_lshl_b32 s61, s{sPH}, 8\nv_add_u32 v23, s61, v22")
    A(f"v_add_f32 v{T}, v{T}, v{T+1}\nv_add_f32 v{T+2}, v{T+2}, v{T+3}\nv_add_f32 v{T+4}, v{T+4}, v{T+5}\nv_add_f32 v{T+6}, v{T+6}, v{T+7}")
    A(f"v_add_f32 v{T}, v{T}, v{T+2}\nv_add_f32 v{T+4}, v{T+4}, v{T+6}")
    A(f"v_mov_b32 v{T+1}, v{T}\nv_mov_b32 v{T+5}, v{T+4}")
    A("s_nop 1")
    A(f"v_permlane32_swap_b32 v{T}, v{T+1}\nv_permlane32_swap_b32 v{T+4}, v{T+5}")
    A("s_nop 1")
    A(f"v_add_f32 v{T}, v{T}, v{T+1}\nv_add_f32 v{T+1}, v{T+4}, v{T+5}")
    A(f"ds_write_b64 v23, {v(T,2)}")
    A("s_waitcnt lgkmcnt(0)")
    fstamp()
    A("s_barrier")
    fstamp()
    A(f"ds_read_b64 {v(T,2)}, v22\nds_read_b64 {v(T+2,2)}, v22 offset:256")
    for c in (2, 3, 4): dma_chunk_static(c)
    if prefetch:
        A(f"s_lshl_b32 s60, s2, 3\ns_add_u32 s60, s60, s{sWAVE}\ns_lshl_b32 s60, s60, 10")
        A(f"v_lshlrev_b32 v20, 4, v{LANE}")
        A(f"s_cmp_eq_u32 s60, 0\ns_cbranch_scc0 {name}_nz")
        A(f"v_lshlrev_b32 v16, 8, v{LANE}\nv_add_u32 v16, {WS_FLAG}, v16\nv_mov_b32 v17, 0")
        A(f"buffer_store_dword v17, v16, s[{sWS}:{sWS+3}], 0 offen")
        A.label(f"{name}_nz")
        srd(A, 36, 16, 17, F * D * 2)
        A(f"buffer_load_dwordx4 v[16:19], v20, s[36:39], s60 offen")
        srd(A, 36, 8, 9, D * D * 2)
        A(f"buffer_load_dwordx4 v[16:19], v20, s[36:39], s60 offen")
    A("s_waitcnt lgkmcnt(0)")
    stamp(2)
    A(f"v_add_f32 v{SX}, v{T}, v{T+2}\nv_add_f32 v{SXX}, v{T+1}, v{T+3}")
    A(f"v_mul_f32 v{SX}, {hex(f32bits(1.0/640))}, v{SX}")
    A(f"v_cvt_pk_bf16_f32 v{T+1}, v{SX}, v{SX}")
    A(f"v_and_b32 v{MF}, 0xffff0000, v{T+1}")
    def centre4(src, idx, dst):
        w1 = ([f"s_set_gpr_idx_on s{sXI}, 0x2"] if idx else []) + \
             sum([[f"v_lshlrev_b32 v{T+2*j}, 16, v{src+j}", f"v_and_b32 v{T+2*j+1}, 0xffff0000, v{src+j}"] for j in range(4)], []) + \
             (["s_set_gpr_idx_off"] if idx else [])
        rest = []
        for j in range(4):
            rest += [f"v_sub_f32 v{T+2*j}, v{T+2*j}, v{MF}", f"v_sub_f32 v{T+2*j+1}, v{T+2*j+1}, v{MF}",
                     f"v_cvt_pk_bf16_f32 v{dst+j}, v{T+2*j}, v{T+2*j+1}"]
        return w1, rest
    A(f"s_lshl_b32 s60, s{sPH}, 11\nv_add_u32 v{XWR}, s60, v{XRD}")
    for ks in range(2):
        w1, rest = centre4(X + 4 * ks, False, XO + 4)
        for o in w1 + rest: A(o)
        A(f"ds_write_b128 v{XWR}, {v(XO+4,4)} offset:{ks*1024}")
    w1, rest = centre4(X + 8, False, XO)
    for o in w1 + rest: A(o)
    sGB, sK64, sK32, sK96, sGI = sDOFF, 57, 58, 59, sTAU
    A(f"s_add_u32 s{sGI}, s{sROT}, 1\ns_cmp_ge_u32 s{sGI}, 5\ns_cselect_b32 s{sGI}, 0, s{sGI}")
    A(f"s_lshl_b32 s{sK64}, s{sLDW}, 6\ns_lshl_b32 s{sK32}, s{sLDW}, 5\ns_add_u32 s{sK96}, s{sK64}, s{sK32}\ns_lshl_b32 s{sSTEP}, s{sLDW}, 7")
    A(f"s_mul_i32 s{sGB}, s{sGI}, s{sSTEP}\ns_add_u32 s{sGB}, s{sGB}, s{sCOL}")
    A(f"s_mov_b32 s{sC}, 0")
    A(f"s_mov_b32 s{sWR}, {5*SLOT}")
    A(f"s_mov_b32 s{sRD}, 0")
    A(f"s_mov_b32 s{sXI}, 0")
    A(f"s_mov_b32 s50, 0x40000000")
    A(f"s_waitcnt vmcnt({14 if prefetch else 12}) lgkmcnt(0)")
    A("s_barrier")
    stamp(3)
    def rd_ops(m):
        ks, tp = divmod(m % 10, 5)
        buf = WF + 4 * (m % 10)
        return [f"ds_read_b64_tr_b16 {v(buf+2*j,2)}, v{RD} offset:{(16*ks+4*j)*320 + tp*32}" for j in range(2)]
    assert Dahead == 6
    for m in range(Dahead):
        for o in rd_ops(m): A(o)
        if m == 0: A(f"ds_read_b128 {v(XC,4)}, v{XRD}")
    A(f"ds_read_b128 {v(XC+4,4)}, v{XRD} offset:1024")
    A("s_waitcnt lgkmcnt(0)")
    def emit_loop(ph):
        lab = f"{name}_loop{ph}"
        stream = []
        for i in range(4):
            e = (i + ph) & 1
            fill = {g: [] for g in range(10)}
            j = (i + 1) & 3
            ksrc = {0: None, 1: sK64, 2: sK32, 3: sK96}[j]
            pre = []
            if j == 0:
                pre += [f"s_add_u32 s{sGI}, s{sGI}, 1", f"s_cmp_ge_u32 s{sGI}, 5", f"s_cselect_b32 s{sGI}, 0, s{sGI}",
                        f"s_mul_i32 s{sGB}, s{sGI}, s{sSTEP}", f"s_add_u32 s{sGB}, s{sGB}, s{sCOL}",
                        f"s_cmp_lt_u32 s{sC}, 3", f"s_cselect_b32 s{sGB}, s{sGB}, 0x40000000"]
            fill[2] += pre
            fill[3] += (["s_waitcnt vmcnt(9)"] if not exp & 16 else []) + ["s_barrier"]
            if i == 0: pass
            fill[3] += [f"s_mov_b32 s{sWR}, s{sWRC}", f"s_mov_b32 s{sWRC}, s{sRD}",
                        f"s_add_u32 s{sRD}, s{sRD}, {SLOT}", f"s_cmp_ge_u32 s{sRD}, {NSLOT*SLOT}", f"s_cselect_b32 s{sRD}, 0, s{sRD}",
                        f"v_add_u32 v{RD}, s{sRD}, v{LP}"]
            fill[4] += [f"s_add_u32 s50, s{sGB}, s{ksrc}" if ksrc else f"s_mov_b32 s50, s{sGB}"]
            dg = dma_gaps
            for jj in range(3):
                if exp & 1: continue
                fill[dg[jj]] = [("m0", f"s_add_u32 m0, s{sWR}, s{sM0+jj}"), ("dma", f"buffer_load_dwordx4 v{DMA+jj}, s[{sW}:{sW+3}], s50 offen lds")] + fill[dg[jj]]
            raw = X + 12 - 4 * ph + 4 * i
            w1, r1 = centre4(raw, True, XO + (0 if e else 4))
            cg = cent_gaps
            if not exp & 4:
                fill[cg[0]] += w1
                fill[cg[1]] += r1[:6]
                fill[cg[2]] += r1[6:]
            if e == 0 and not exp & 8:
                if wmode == 0:
                    fill[cg[2]] += [f"ds_write_b128 v{XWR}, {v(XO,4)}", f"ds_write_b128 v{XWR}, {v(XO+4,4)} offset:1024"]
                elif wmode == 1:
                    fill[4] = [f"ds_write_b128 v{XWR}, {v(XO,4)}"] + fill[4]
                    fill[cg[2] + 1] += [f"ds_write_b128 v{XWR}, {v(XO+4,4)} offset:1024"]
                elif wmode == 2:
                    fill[4] = [f"ds_write_b64 v{XWR}, {v(XO,2)}"] + fill[4]
                    fill[5] = [f"ds_write_b64 v{XWR}, {v(XO+2,2)} offset:8"] + fill[5]
                    fill[cg[2]] += [f"ds_write_b64 v{XWR}, {v(XO+4,2)} offset:1024"]
                    fill[cg[2] + 1] += [f"ds_write_b64 v{XWR}, {v(XO+6,2)} offset:1032"]
                elif wmode == 3:
                    fill[4] = [f"ds_write2_b64 v{XWR}, {v(XO,2)}, {v(XO+2,2)} offset0:0 offset1:1"] + fill[4]
                    fill[cg[2] + 1] += [f"ds_write2_b64 v{XWR}, {v(XO+4,2)}, {v(XO+6,2)} offset0:128 offset1:129"]
            xb = ((i + 1) & 1) * 2048
            xrd = {4: f"ds_read_b128 {v(XC,4)}, v{XRD} offset:{xb}", 9: f"ds_read_b128 {v(XC+4,4)}, v{XRD} offset:{xb+1024}"}
            if i == 3:
                fill[9] += [f"s_add_u32 s{sXI}, s{sXI}, 16", f"s_add_u32 s{sC}, s{sC}, 1", f"s_cmp_lt_u32 s{sC}, 5", f"s_cbranch_scc1 {lab}"]
            for m in range(10):
                ks, tp = divmod(m, 5)
                stream.append(("mfma", (i, m), f"v_mfma_f32_32x32x16_bf16 {a(16*tp,16)}, {v(WF+4*m,4)}, {v(XC+4*ks,4)}, {a(16*tp,16)}"))
                m0s = [o for o in fill[m] if isinstance(o, tuple) and o[0] == "m0"]
                rds = rd_ops(m + Dahead)
                tgt = ((i + (m + Dahead) // 10) % 4, (m + Dahead) % 10)
                first = True
                if m0s: stream.append(("other", None, m0s[0][1]))
                for o in rds: stream.append(("lds", ("w",) + tgt, o))
                if m in xrd: stream.append(("lds", ("x", (i + 1) % 4, 0 if m == 4 else 1), xrd[m]))
                seen_m0 = 0
                for o in fill[m]:
                    if isinstance(o, tuple):
                        if o[0] == "m0":
                            seen_m0 += 1
                            if seen_m0 == 1: continue
                            stream.append(("other", None, o[1])); stream.append(("other", None, "s_nop 0"))
                        else: stream.append(("other", None, o[1]))
                    elif o.startswith("ds_"): stream.append(("lds", ("st",), o))
                    elif exp & 2 and o == "s_barrier": continue
                    else: stream.append(("other", None, o))
        A(".p2align 6")
        A.label(lab)
        L = len(stream)
        full = stream + stream
        def need_n(pos, tag):
            p = max(q for q in range(pos) if full[q][0] == "lds" and full[q][1] == tag)
            return sum(1 for q in range(p + 1, pos) if full[q][0] == "lds")
        for q, (kind, tag, txt) in enumerate(stream):
            if kind == "mfma":
                i, m = tag
                if m % wait_every == 0:
                    ns = []
                    for mm in range(m, min(m + wait_every, 10)):
                        ns += [need_n(L + q, ("w", i, mm)), need_n(L + q, ("x", i, mm // 5))]
                    A(f"s_waitcnt lgkmcnt({min(min(ns), 15)})")
            A(txt)
    A(f"s_mov_b32 s{sWRC}, {5*SLOT}")
    if exp & 32: A(f"v_lshlrev_b32 v{XWR}, 4, v{LANE}\nv_add_u32 v{XWR}, {ST_BASE}, v{XWR}")
    A(f"s_cmp_eq_u32 s{sPH}, 0")
    A(f"s_cbranch_scc0 {name}_loop1")
    emit_loop(0)
    A(f"s_branch {name}_done")
    emit_loop(1)
    A.label(f"{name}_done")
    A("s_waitcnt lgkmcnt(0)")
    stamp(4)
    A(f"v_mul_f32 v{T}, {hex(f32bits(1.0/640))}, v{SXX}")
    A(f"v_fma_f32 v{T}, -v{SX}, v{SX}, v{T}")
    A(f"v_max_f32 v{T}, 0, v{T}")
    A(f"v_cvt_pk_bf16_f32 v{T}, v{T}, v{T}\nv_lshlrev_b32 v{T}, 16, v{T}")
    A(f"v_add_f32 v{T}, {hex(f32bits(1e-5))}, v{T}")
    A(f"v_cvt_pk_bf16_f32 v{T}, v{T}, v{T}\nv_lshlrev_b32 v{T}, 16, v{T}")
    A(f"v_sqrt_f32 v{T}, v{T}")
    A("s_nop 0")
    A(f"v_cvt_pk_bf16_f32 v{T}, v{T}, v{T}\nv_lshlrev_b32 v{T}, 16, v{T}")
    A(f"v_rcp_f32 v{MF}, v{T}")
    A(f"s_cmp_lt_u32 s{sNB}, 6")
    A(f"s_cbranch_scc0 {name}_epi_h")
    VL16 = 2
    A(f"v_lshlrev_b32 v{VL16}, 4, v{LANE}")
    A(f"s_cmp_lt_u32 s{sNB}, 2")
    A(f"s_cselect_b32 s60, {hex(f32bits((20 ** -0.5) * 1.4426950408889634))}, 1.0")
    A(f"v_mul_f32 v{MF}, s60, v{MF}\nv_mov_b32 v{MF+1}, v{MF}")
    A(f"s_lshr_b32 s50, s{sROW0}, 5\ns_mul_i32 s50, s50, {QKV_T}\ns_add_u32 s50, s50, {WS_QKV}")
    A(f"s_mul_i32 s51, s{sNB}, {40*512}\ns_add_u32 s50, s50, s51\ns_mul_i32 s51, s{sPH}, {10*512}\ns_add_u32 s50, s50, s51")
    q = 0
    for p in range(2):
        for tp in range(5):
            R4 = 56 + 4 * (q % 2)
            E = 32 + 8 * (q % 2); q += 1
            base = tp * 16 + 8 * p
            for i in range(8): A(f"v_accvgpr_read_b32 v{E+i}, a{base+i}")
            for i in range(4): A(f"v_pk_mul_f32 {v(E+2*i,2)}, {v(E+2*i,2)}, {v(MF,2)}")
            for i in range(4): A(f"v_cvt_pk_bf16_f32 v{R4+i}, v{E+2*i}, v{E+2*i+1}")
            A("s_nop 1")
            A(f"v_permlane32_swap_b32 v{R4}, v{R4+2}\nv_permlane32_swap_b32 v{R4+1}, v{R4+3}")
            A("s_nop 0")
            A(f"buffer_store_dwordx4 {v(R4,4)}, v{VL16}, s[{sWS}:{sWS+3}], s50 offen offset:{(tp%4)*1024} sc1")
            if tp == 3: A("s_add_u32 s50, s50, 4096")
        if p == 0: A(f"s_add_u32 s50, s50, {20*512 - 4096}")
    A(f"s_branch {name}_end")
    A.label(f"{name}_epi_h")
    A(f"v_lshlrev_b32 v{VL16}, 4, v{LANE}")
    A(f"v_mul_f32 v{MF}, v{MF}, v{MF}")
    A(f"v_mov_b32 v{MF+1}, v{MF}")
    A(f"s_lshr_b32 s50, s{sROW0}, 5\ns_mul_i32 s50, s50, 98304\ns_add_u32 s50, s50, {WS_H}")
    A(f"s_sub_u32 s51, s{sNB}, 6\ns_mul_i32 s51, s51, 10240\ns_add_u32 s50, s50, s51")
    A(f"s_mul_i32 s51, s{sPH}, 5120\ns_add_u32 s50, s50, s51")
    A(f"s_cmp_eq_u32 s{sNB}, 15\ns_cselect_b32 s61, s{sPH}, 0")
    q = 0
    for tp in range(5):
        if tp == 1:
            A(f"s_cmp_eq_u32 s61, 1\ns_cbranch_scc1 {name}_end")
        R4 = 56 + 4 * (tp % 2)
        for a2 in range(2):
            E = 32 + 12 * (q % 2); q += 1
            bg, bu = tp * 16 + 4 * a2, tp * 16 + 8 + 4 * a2
            for i in range(4): A(f"v_accvgpr_read_b32 v{E+i}, a{bg+i}")
            for i in range(4): A(f"v_accvgpr_read_b32 v{E+4+i}, a{bu+i}")
            A(f"v_pk_mul_f32 {v(E,2)}, {v(E,2)}, {v(MF,2)}\nv_pk_mul_f32 {v(E+2,2)}, {v(E+2,2)}, {v(MF,2)}")
            for i in range(4): A(f"v_max_f32 v{E+i}, 0, v{E+i}")
            A(f"v_pk_mul_f32 {v(E,2)}, {v(E,2)}, {v(E+4,2)}\nv_pk_mul_f32 {v(E+2,2)}, {v(E+2,2)}, {v(E+6,2)}")
            A(f"v_cvt_pk_bf16_f32 v{R4+2*a2}, v{E}, v{E+1}\nv_cvt_pk_bf16_f32 v{R4+2*a2+1}, v{E+2}, v{E+3}")
        A("s_nop 1")
        A(f"v_permlane32_swap_b32 v{R4}, v{R4+2}\nv_permlane32_swap_b32 v{R4+1}, v{R4+3}")
        A("s_nop 0")
        A(f"buffer_store_dwordx4 {v(R4,4)}, v{VL16}, s[{sWS}:{sWS+3}], s50 offen offset:{(tp%4)*1024} sc1")
        if tp == 3: A("s_add_u32 s50, s50, 4096")
    A.label(f"{name}_end")
    if stamps:
        A("s_cmp_ge_u32 s2, 256")
        A(f"s_cbranch_scc1 {name}_end2")
        A("s_waitcnt vmcnt(0)")
        stamp(5)
        A(f"s_lshl_b32 s50, s2, 3\ns_add_u32 s50, s50, s{sWAVE}\ns_lshl_b32 s50, s50, 6\ns_add_u32 s50, s50, {WS_END}")
        A("v_mov_b32 v2, 0")
        for i in range(6):
            A(f"v_mov_b32 v3, s{72+i}")
            A(f"buffer_store_dword v3, v2, s[{sWS}:{sWS+3}], s50 offen offset:{4*i}")
        for i in range(fcount[0]):
            A(f"v_mov_b32 v3, s{90+i}")
            A(f"buffer_store_dword v3, v2, s[{sWS}:{sWS+3}], s50 offen offset:{24+4*i}")
        A.label(f"{name}_end2")
    rt_end(A, rt, 0, sWS, name)
    A("s_waitcnt vmcnt(0)")
    A("s_endpgm")
    return A.text(), kernel_desc(name, 256, 176)
```

```python
from common import *
import struct
def f32bits(x): return struct.unpack("<I", struct.pack("<f", x))[0]

LT = 3136
KVSLOT = 8 * LT
GW_BASE = 3 * KVSLOT
GW_STAGE = 5120
GW_WAVE = 4 * GW_STAGE
K2_LDS = GW_BASE + 4 * GW_WAVE
RED_BASE = GW_BASE

def gemm_lane_setup(A, LANE, sLDWrow, VD, VRD):
    A("s_movk_i32 s60, 3277")
    A("s_movk_i32 s61, 1280")
    for i in range(5):
        A(f"v_add_u32 v5, {i*64}, v{LANE}")
        A("v_mul_lo_u32 v6, v5, s60")
        A("v_lshrrev_b32 v6, 16, v6")
        A("v_mul_u32_u24 v7, 20, v6")
        A("v_sub_u32 v7, v5, v7")
        A("v_mul_lo_u32 v6, v6, s61")
        A(f"v_lshl_add_u32 v{VD+i}, v7, 4, v6")
    A(f"v_and_b32 v5, 15, v{LANE}")
    A(f"v_lshrrev_b32 v6, 5, v{LANE}")
    A("v_lshrrev_b32 v7, 2, v5")
    A("v_lshl_add_u32 v7, v6, 3, v7")
    A(f"v_mul_u32_u24 v{VRD}, 320, v7")
    A("v_and_b32 v7, 3, v5")
    A(f"v_lshl_add_u32 v{VRD}, v7, 3, v{VRD}")
    A(f"v_bfe_u32 v7, v{LANE}, 4, 1")
    A(f"v_lshl_add_u32 v{VRD}, v7, 5, v{VRD}")

def gen_k2(name="k2_kernel", rt=False, stamps=False, force_fallback=False, no_gemm=False, abl=0, prio=0, fuse=1, gstamps=0, sleep0=16, sleep1=8):
    A = Asm()
    A.raw(kernel_header(name))
    LANE = 1
    sWS, sX, sWD = 24, 28, 32
    sWAVE, sHEAD, sQB, sT, sNQ = 40, 41, 42, 43, 44
    def stamp(i):
        if not stamps: return
        A(f"s_memtime s[70:71]")
        A("s_waitcnt lgkmcnt(0)")
        A(f"s_mov_b32 s{72+i}, s70")
    def stamp_out(n, lab):
        if not stamps: return
        A("s_waitcnt vmcnt(0)")
        stamp(n)
        A(f"s_mul_i32 s50, s2, 12\ns_add_u32 s50, s50, s{sWAVE}\ns_lshl_b32 s50, s50, 6\ns_add_u32 s50, s50, {WS_END}")
        A("v_mov_b32 v2, 0")
        for i in range(n + 1):
            A(f"v_mov_b32 v3, s{72+i}")
            A(f"buffer_store_dword v3, v2, s[{sWS}:{sWS+3}], s50 offen offset:{4*i}")
    A("s_cmp_ge_u32 s2, 256")
    A(f"s_cbranch_scc1 {name}_end")
    rt_begin(A, rt)
    stamp(0)
    A("s_load_dwordx2 s[4:5], s[0:1], 0")
    A("s_load_dwordx2 s[6:7], s[0:1], 48")
    A("s_load_dwordx2 s[8:9], s[0:1], 72")
    A("s_load_dwordx2 s[10:11], s[0:1], 16")
    A("s_load_dwordx4 s[12:15], s[0:1], 56")
    A(f"v_and_b32 v{LANE}, 63, v0")
    A("v_lshrrev_b32 v2, 6, v0")
    A("s_and_b32 s50, s2, 7\ns_lshr_b32 s51, s2, 3")
    A(f"v_readfirstlane_b32 s{sWAVE}, v2")
    A(f"s_and_b32 s{sHEAD}, s51, 3\ns_lshl_b32 s52, s50, 2\ns_add_u32 s{sHEAD}, s{sHEAD}, s52")
    A(f"s_lshr_b32 s{sQB}, s51, 2")
    A(f"s_and_b32 s{sT}, s51, 7\ns_lshl_b32 s52, s50, 3\ns_add_u32 s{sT}, s{sT}, s52")
    A(f"s_lshr_b32 s{sNQ}, s51, 3")
    A("s_waitcnt lgkmcnt(0)")
    srd(A, sWS, 8, 9, WS_SIZE)
    A(f"s_cmp_ge_u32 s{sWAVE}, 8")
    A(f"s_cbranch_scc1 {name}_gemm")
    Q1, Q2, Q1B, Q2B, K1, K2, VLO, VHI = 8, 12, 16, 20, 24, 28, 32, 36
    P, PB, O, OB, S0, S1 = 40, 48, 56, 72, 88, 104
    aK1, aK2, aV = 120, 121, 122
    lK1, lK2 = 126, 127
    TQ, HF, TMP = 128, 129, 130
    LK1, LK2, LV = 135, 136, 137
    sSLOT, sC, sHFM, sQT, sKH, sQG, sPAR, sHB = 45, 46, 48, 47, 55, 56, 57, 58
    A(f"v_and_b32 v{TQ}, 31, v{LANE}")
    A(f"v_lshrrev_b32 v{HF}, 5, v{LANE}")
    A(f"v_cmp_lt_u32 s[{sHFM}:{sHFM+1}], 31, v{LANE}")
    A(f"s_and_b32 s{sQG}, s{sWAVE}, 3\ns_lshr_b32 s{sKH}, s{sWAVE}, 2")
    A(f"s_lshl_b32 s{sQT}, s{sQB}, 3\ns_lshl_b32 s50, s{sQG}, 1\ns_add_u32 s{sQT}, s{sQT}, s50")
    A(f"s_xor_b32 s52, s{sKH}, 1\ns_add_u32 s52, s52, s{sQT}\ns_add_u32 s{sQT}, s{sQT}, s{sKH}")
    A(f"s_and_b32 s{sPAR}, s{sHEAD}, 1\ns_mul_i32 s{sHB}, s{sHEAD}, 5\ns_lshr_b32 s{sHB}, s{sHB}, 1\ns_lshl_b32 s{sHB}, s{sHB}, 9\ns_add_u32 s{sHB}, s{sHB}, {WS_QKV}")
    A(f"s_lshl_b32 s50, s{sPAR}, 9")
    A(f"v_lshlrev_b32 v{lK1}, 4, v{LANE}\nv_add_u32 v{lK1}, s50, v{lK1}")
    A(f"s_cmp_eq_u32 s{sPAR}, 0\ns_cselect_b32 s50, 1024, 8")
    A(f"v_lshlrev_b32 v{lK2}, 4, v{TQ}\nv_add_u32 v{lK2}, s50, v{lK2}")
    A(f"s_mul_i32 s51, s{sQT}, {QKV_T}\ns_add_u32 s51, s51, s{sHB}\ns_mul_i32 s52, s52, {QKV_T}\ns_add_u32 s52, s52, s{sHB}")
    A(f"buffer_load_dwordx4 {v(Q1,4)}, v{lK1}, s[{sWS}:{sWS+3}], s51 offen")
    A(f"buffer_load_dwordx2 {v(Q2,2)}, v{lK2}, s[{sWS}:{sWS+3}], s51 offen")
    A(f"buffer_load_dwordx4 {v(Q1B,4)}, v{lK1}, s[{sWS}:{sWS+3}], s52 offen")
    A(f"buffer_load_dwordx2 {v(Q2B,2)}, v{lK2}, s[{sWS}:{sWS+3}], s52 offen")
    A(f"s_add_u32 s53, s{sHB}, {80*512}")
    A(f"buffer_load_dwordx4 {v(K1,4)}, v{lK1}, s[{sWS}:{sWS+3}], s53 offen")
    A(f"buffer_load_dwordx2 {v(K2,2)}, v{lK2}, s[{sWS}:{sWS+3}], s53 offen")
    A(f"v_and_b32 v2, 15, v{LANE}\nv_and_b32 v3, 3, v2\nv_lshrrev_b32 v2, 2, v2")
    A(f"v_bfe_u32 v4, v{LANE}, 4, 1")
    A("v_lshl_add_u32 v3, v4, 2, v3")
    A("v_cmp_lt_u32 vcc, 4, v3")
    A(f"v_add_u32 v3, s{sPAR}, v3")
    A("v_lshrrev_b32 v4, 1, v3\nv_and_b32 v3, 1, v3")
    A(f"v_lshl_add_u32 v2, v{HF}, 2, v2\nv_lshl_add_u32 v2, v4, 2, v2")
    A("v_lshlrev_b32 v5, 9, v4\nv_lshl_add_u32 v5, v3, 3, v5\nv_add_u32 v5, 1536, v5")
    A(f"s_mul_i32 s50, s{sKH}, {LT}")
    A("v_mov_b32 v7, 3072")
    for mj in range(4):
        A(f"v_add_u32 v6, {8*mj}, v2\nv_and_b32 v6, 31, v6\nv_lshl_add_u32 v6, v6, 4, v5")
        A(f"v_cndmask_b32 v6, v6, v7, vcc\nv_add_u32 v{LV+mj}, s50, v6\nv_mov_b32 v{aV+mj}, v{LV+mj}")
    A(f"v_add_u32 v{LK1}, s50, v{lK1}\nv_add_u32 v{LK2}, s50, v{lK2}")
    A(f"v_mov_b32 v{aK1}, v{LK1}\nv_mov_b32 v{aK2}, v{LK2}")
    A(f"v_mov_b32 v{K2+2}, 0x3f80\nv_mov_b32 v{K2+3}, 0")
    for q2 in (Q2, Q2B): A(f"v_mov_b32 v{q2+2}, 0\nv_mov_b32 v{q2+3}, 0")
    for i in range(32): A(f"v_mov_b32 v{O+i}, 0")
    for i in range(4): A(f"v_mov_b32 v{VHI+i}, 0\nv_mov_b32 v{PB+4+i}, 0")
    A("s_waitcnt vmcnt(0)")
    for q2 in (Q2, Q2B):
        A(f"v_cndmask_b32 v{q2}, v{q2}, v{q2+3}, s[{sHFM}:{sHFM+1}]")
        A(f"v_cndmask_b32 v{q2+1}, v{q2+1}, v{q2+3}, s[{sHFM}:{sHFM+1}]")
    A("s_nop 1")
    M = lambda d, x, y, c: A(f"v_mfma_f32_32x32x16_bf16 {v(d,16)}, {v(x,4)}, {v(y,4)}, {c}")
    M(S0, K1, Q1, "0"); M(S1, K1, Q1B, "0"); M(S0, K2, Q2, v(S0,16)); M(S1, K2, Q2B, v(S1,16))
    A("s_nop 15\ns_nop 3")
    for (Sx, q2, tm) in ((S0, Q2, TMP), (S1, Q2B, TMP + 2)):
        A(f"v_max3_f32 v{tm}, v{Sx}, v{Sx+1}, v{Sx+2}")
        for i in range(3, 15, 2): A(f"v_max3_f32 v{tm}, v{tm}, v{Sx+i}, v{Sx+i+1}")
        A(f"v_max_f32 v{tm}, v{tm}, v{Sx+15}")
        A(f"v_mov_b32 v{tm+1}, v{tm}")
        A("s_nop 1")
        A(f"v_permlane32_swap_b32 v{tm}, v{tm+1}")
        A("s_nop 1")
        A(f"v_max_f32 v{tm}, v{tm}, v{tm+1}")
        A(f"v_sub_f32 v{tm}, 0, v{tm}")
        A(f"v_cvt_pk_bf16_f32 v{tm}, v{tm}, v{q2+3}")
        A(f"v_cndmask_b32 v{q2+2}, v{tm}, v{q2+3}, s[{sHFM}:{sHFM+1}]")
    if prio: A(f"s_setprio {prio}")
    A("s_barrier")
    stamp(1)
    aVLO = aVHI = None
    def vrd(dst, areg, tile, m):
        return [f"ds_read_b64_tr_b16 {v(dst+2*j,2)}, v{aV+2*m+j} offset:{tile*LT}" for j in range(2)]
    A(f"ds_read_b128 {v(K1,4)}, v{aK1}")
    A(f"ds_read_b64 {v(K2,2)}, v{aK2}")
    for o in vrd(VLO, aVLO, 0, 0): A(o)
    A(f"s_mov_b32 s{sSLOT}, {KVSLOT}")
    A(f"s_mov_b32 s{sC}, 0")
    A("s_waitcnt lgkmcnt(0)")
    M(S0, K1, Q1, "0"); M(S0, K2, Q2, v(S0,16))
    A("s_nop 15")
    A(".p2align 6")
    A.label(f"{name}_aloop")
    def expcvt(Sx, i0, p0, Px=None):
        Px = P if Px is None else Px
        for i in range(4): A(f"v_exp_f32 v{Sx+i0+i}, v{Sx+i0+i}")
        A(f"v_cvt_pk_bf16_f32 v{Px+p0}, v{Sx+i0}, v{Sx+i0+1}")
        A(f"v_cvt_pk_bf16_f32 v{Px+p0+1}, v{Sx+i0+2}, v{Sx+i0+3}")
    for i in range(4):
        nt_ = 2 * ((i + 1) % 4)
        if i == 3:
            if not abl & 2: A("s_barrier")
            A(f"v_add_u32 v{aK1}, s{sSLOT}, v{LK1}\nv_add_u32 v{aK2}, s{sSLOT}, v{LK2}\nv_add_u32 v{aV}, s{sSLOT}, v{LV}\nv_add_u32 v{aV+1}, s{sSLOT}, v{LV+1}")
        M(S1, K1, Q1B, "0")
        A(f"ds_read_b128 {v(K1,4)}, v{aK1} offset:{nt_*LT}")
        expcvt(S0, 0, 0)
        M(OB, VHI, PB + 4, v(OB,16))
        for o in vrd(VHI, aVHI, 2 * i, 1): A(o)
        expcvt(S0, 4, 2)
        M(S1, K2, Q2B, v(S1,16))
        A(f"ds_read_b64 {v(K2,2)}, v{aK2} offset:{nt_*LT}")
        expcvt(S0, 8, 4)
        A("s_waitcnt lgkmcnt(4)")
        M(O, VLO, P, v(O,16))
        expcvt(S0, 12, 6)
        A("s_waitcnt lgkmcnt(3)")
        M(S0, K1, Q1, "0")
        expcvt(S1, 0, 0, PB)
        A("s_waitcnt lgkmcnt(1)")
        M(O, VHI, P + 4, v(O,16))
        expcvt(S1, 4, 2, PB)
        A("s_waitcnt lgkmcnt(0)")
        M(S0, K2, Q2, v(S0,16))
        expcvt(S1, 8, 4, PB)
        M(OB, VLO, PB, v(OB,16))
        for o in vrd(VLO, aVLO, nt_, 0): A(o)
        expcvt(S1, 12, 6, PB)
    A(f"v_add_u32 v{aV+2}, s{sSLOT}, v{LV+2}\nv_add_u32 v{aV+3}, s{sSLOT}, v{LV+3}")
    A(f"s_add_u32 s{sSLOT}, s{sSLOT}, {KVSLOT}\ns_cmp_ge_u32 s{sSLOT}, {3*KVSLOT}\ns_cselect_b32 s{sSLOT}, 0, s{sSLOT}")
    A(f"s_add_u32 s{sC}, s{sC}, 1\ns_cmp_lt_u32 s{sC}, 8")
    A(f"s_cbranch_scc1 {name}_aloop")
    M(OB, VHI, PB + 4, v(OB,16))
    stamp(2)
    A(f"s_mul_i32 s50, s{sWAVE}, 3072\ns_xor_b32 s52, s{sWAVE}, 4\ns_mul_i32 s52, s52, 3072")
    A(f"v_lshlrev_b32 v2, 4, v{LANE}\nv_add_u32 v3, s52, v2\nv_add_u32 v2, s50, v2")
    A("s_waitcnt lgkmcnt(0)")
    A("s_nop 7")
    for q in range(3): A(f"ds_write_b128 v2, {v(OB+4*q,4)} offset:{q*1024}")
    A("s_waitcnt lgkmcnt(0)")
    A("s_barrier")
    for q in range(3): A(f"ds_read_b128 {v(OB+4*q,4)}, v3 offset:{q*1024}")
    A("s_waitcnt lgkmcnt(0)")
    for i in range(12): A(f"v_add_f32 v{O+i}, v{O+i}, v{OB+i}")
    A(f"v_mov_b32 v{TMP}, v{O+8}\nv_mov_b32 v{O+12}, v{O+8}")
    A("s_nop 1")
    A(f"v_permlane32_swap_b32 v{TMP}, v{O+12}")
    A("s_nop 1")
    A(f"v_cndmask_b32 v{TMP}, v{O+12}, v{O+8}, s[{sHFM}:{sHFM+1}]")
    A(f"v_cmp_le_f32 vcc, {hex(f32bits(2.0**-60))}, v{TMP}")
    A(f"v_cmp_ge_f32 s[50:51], {hex(0)}, v{TMP}" if False else f"s_mov_b32 s52, {hex(f32bits(2.0**60))}")
    A(f"v_cmp_ge_f32 s[50:51], s52, v{TMP}")
    A("s_nop 1")
    A("s_and_b64 vcc, vcc, s[50:51]")
    A("s_cmp_eq_u64 vcc, exec")
    if force_fallback: A("s_cmp_eq_u32 s2, 0x7fffffff")
    A(f"s_cbranch_scc0 {name}_fallback")
    A.label(f"{name}_aepi")
    A(f"v_rcp_f32 v{TMP}, v{TMP}")
    A(f"s_mul_i32 s50, s{sQT}, 40960\ns_add_u32 s50, s50, {WS_O}")
    A(f"s_mul_i32 s51, s{sHEAD}, 20")
    A(f"v_lshl_add_u32 v2, v{HF}, 2, s51")
    for qd in range(3):
        if qd == 1: A("v_add_u32 v2, 8, v2")
        if qd == 2: A("v_add_u32 v2, 8, v2")
        A("v_lshrrev_b32 v3, 3, v2\nv_lshlrev_b32 v3, 9, v3")
        A("v_and_b32 v4, 4, v2\nv_lshl_add_u32 v3, v4, 1, v3")
        A(f"v_lshl_add_u32 v3, v{TQ}, 4, v3")
        for i in range(4): A(f"v_mul_f32 v{O+4*qd+i}, v{O+4*qd+i}, v{TMP}")
        A(f"v_cvt_pk_bf16_f32 v{P+2*qd}, v{O+4*qd}, v{O+4*qd+1}\nv_cvt_pk_bf16_f32 v{P+2*qd+1}, v{O+4*qd+2}, v{O+4*qd+3}")
        if qd == 2:
            A(f"s_andn2_b64 exec, exec, s[{sHFM}:{sHFM+1}]")
        A(f"buffer_store_dwordx2 {v(P+2*qd,2)}, v3, s[{sWS}:{sWS+3}], s50 offen" + (" sc1" if fuse else ""))
    A("s_mov_b64 exec, -1")
    if fuse:
        A("s_waitcnt vmcnt(0)")
        A("s_barrier")
    stamp_out(3, None)
    A(f"s_branch {name}_end")
    A.label(f"{name}_fallback")
    M, AL, VA0, VA1 = TMP + 1, TMP + 2, TMP + 3, TMP + 4
    A(f"v_mov_b32 v{Q2+2}, 0")
    for i in range(16): A(f"v_mov_b32 v{O+i}, 0")
    A(f"v_mov_b32 v{M}, 0xff7fffff")
    A(f"v_lshrrev_b32 v2, 2, v{TQ}\nv_min_u32 v2, 4, v2\nv_add_u32 v2, s{sPAR}, v2")
    A(f"v_lshrrev_b32 v3, 1, v2\nv_lshlrev_b32 v{VA0}, 9, v3\nv_and_b32 v2, 1, v2\nv_lshl_add_u32 v{VA0}, v2, 3, v{VA0}")
    A(f"v_and_b32 v2, 3, v{TQ}\nv_lshl_add_u32 v{VA0}, v2, 1, v{VA0}\nv_lshl_add_u32 v{VA0}, v{HF}, 6, v{VA0}")
    A(f"v_add_u32 v{VA0}, {80*512}, v{VA0}")
    A(f"v_cmp_lt_u32 s[60:61], 19, v{TQ}\nv_cmp_eq_u32 vcc, 0, v2\nv_mov_b32 v3, 0x3f803f80\ns_nop 1\nv_cndmask_b32 v{LV}, 0, v3, vcc")
    A(f"s_add_u32 s50, s{sHB}, {80*512}")
    A("s_mov_b32 s54, 0")
    A.label(f"{name}_floop")
    A(f"buffer_load_dwordx4 {v(K1,4)}, v{lK1}, s[{sWS}:{sWS+3}], s50 offen")
    A(f"buffer_load_dwordx2 {v(K2,2)}, v{lK2}, s[{sWS}:{sWS+3}], s50 offen")
    for m in range(2):
        for e in range(8):
            A(f"buffer_load_ushort v{S1+8*m+e}, v{VA0}, s[{sWS}:{sWS+3}], s50 offen offset:{(16*m + 8*(e>>2) + (e&3))*16}")
    A("s_waitcnt vmcnt(16)")
    A(f"v_mfma_f32_32x32x16_bf16 {v(S0,16)}, {v(K1,4)}, {v(Q1,4)}, 0")
    A(f"v_mfma_f32_32x32x16_bf16 {v(S0,16)}, {v(K2,4)}, {v(Q2,4)}, {v(S0,16)}")
    A("s_nop 15\ns_nop 3")
    A(f"v_max3_f32 v{AL}, v{S0}, v{S0+1}, v{M}")
    for i in range(2, 16, 2): A(f"v_max3_f32 v{AL}, v{AL}, v{S0+i}, v{S0+i+1}")
    A(f"v_mov_b32 v{VA1}, v{AL}")
    A("s_nop 1")
    A(f"v_permlane32_swap_b32 v{AL}, v{VA1}")
    A("s_nop 1")
    A(f"v_max_f32 v{VA1}, v{AL}, v{VA1}")
    A(f"v_sub_f32 v{AL}, v{M}, v{VA1}")
    A(f"v_exp_f32 v{AL}, v{AL}")
    A(f"v_mov_b32 v{M}, v{VA1}")
    for i in range(16): A(f"v_sub_f32 v{S0+i}, v{S0+i}, v{M}")
    for i in range(16): A(f"v_mul_f32 v{O+i}, v{O+i}, v{AL}")
    for g in range(4): expcvt(S0, 4 * g, 2 * g)
    A("s_waitcnt vmcnt(0)")
    for m in range(2):
        for e in range(4):
            A(f"v_lshl_or_b32 v{(VLO if m == 0 else VHI)+e}, v{S1+8*m+2*e+1}, 16, v{S1+8*m+2*e}")
            A(f"v_cndmask_b32 v{(VLO if m == 0 else VHI)+e}, v{(VLO if m == 0 else VHI)+e}, v{LV}, s[60:61]")
    A("s_nop 1")
    A(f"v_mfma_f32_32x32x16_bf16 {v(O,16)}, {v(VLO,4)}, {v(P,4)}, {v(O,16)}")
    A(f"v_mfma_f32_32x32x16_bf16 {v(O,16)}, {v(VHI,4)}, {v(P+4,4)}, {v(O,16)}")
    A("s_nop 15\ns_nop 3")
    A(f"s_add_u32 s50, s50, {QKV_T}")
    A("s_add_u32 s54, s54, 1\ns_cmp_lt_u32 s54, 64")
    A(f"s_cbranch_scc1 {name}_floop")
    A(f"v_cndmask_b32 v{TMP}, v{O+12}, v{O+8}, s[{sHFM}:{sHFM+1}]")
    A(f"s_branch {name}_aepi")
    A.label(f"{name}_gemm")
    gst = mk_stamp(A, gstamps)
    gst(0)
    ACC, WFR, HFR = 8, 88, 108
    VD, VRD, VL16, VX, XR, VRD2 = 148, 153, 154, 155, 156, 166
    OFR = 108
    sG, sKV, sKVL, sWO, sHO2, sLB, sI, sSL = 45, 46, 47, 48, 49, 52, 53, 54
    srd(A, sX, 4, 5, S * D * 2)
    srd(A, sWD, 6, 7, F * D * 2)
    A(f"s_sub_u32 s{sG}, s{sWAVE}, 8")
    A(f"v_lshlrev_b32 v{VL16}, 4, v{LANE}")
    VKV = 144
    A(f"s_mul_i32 s{sKV}, s{sHEAD}, 5\ns_lshr_b32 s{sKV}, s{sKV}, 1\ns_lshl_b32 s{sKV}, s{sKV}, 9\ns_add_u32 s{sKV}, s{sKV}, {WS_QKV + 80*512}")
    A(f"s_mul_i32 s50, s{sG}, {2*QKV_T}\ns_add_u32 s{sKV}, s{sKV}, s50\ns_mul_i32 s{sKVL}, s{sG}, {2*LT}")
    A(f"v_and_b32 v2, 31, v{LANE}\nv_lshrrev_b32 v3, 5, v{LANE}")
    A(f"v_cmp_lt_u32 vcc, 31, v{LANE}")
    A(f"v_lshlrev_b32 v4, 4, v2\nv_add_u32 v5, 1024, v4\nv_add_u32 v6, {80*512}, v4\nv_cndmask_b32 v{VKV}, v5, v6, vcc")
    A("v_lshl_add_u32 v5, v3, 2, 4\nv_sub_u32 v5, v2, v5\nv_and_b32 v5, 31, v5")
    A(f"v_lshlrev_b32 v5, 4, v5\nv_lshl_add_u32 v5, v3, 9, v5\nv_add_u32 v{VKV+1}, {80*512 + 512}, v5")
    def kv_dma(slot_sreg):
        for tl in range(2):
            A(f"s_add_u32 s50, s{sKV}, {tl*QKV_T}")
            for part in range(3):
                A(f"s_add_u32 m0, s{slot_sreg}, {tl*LT + part*1024}")
                A("s_nop 0")
                A(f"buffer_load_dwordx4 v{[VL16, VKV, VKV+1][part]}, s[{sWS}:{sWS+3}], s50 offen lds")
        A(f"s_add_u32 s{sKV}, s{sKV}, {8*QKV_T}")
    A(f"s_cmp_eq_u32 s{sG}, 0\ns_cbranch_scc0 {name}_noones")
    A(f"v_mul_u32_u24 v4, {LT}, v{LANE}\nv_add_u32 v4, 3072, v4\nv_mov_b32 v6, 0x3f80\nv_mov_b32 v7, 0")
    A("s_mov_b64 exec, 0xffffff")
    A("ds_write_b64 v4, v[6:7]")
    A("s_mov_b64 exec, -1")
    A.label(f"{name}_noones")
    A(f"s_mov_b32 s{sSL}, s{sKVL}")
    kv_dma(sSL)
    gemm_lane_setup(A, LANE, None, VD, VRD)
    A(f"s_mul_i32 s{sLB}, s{sG}, {GW_WAVE}\ns_add_u32 s{sLB}, s{sLB}, {GW_BASE}")
    A(f"v_add_u32 v{VRD}, s{sLB}, v{VRD}")
    A(f"s_mul_i32 s{sWO}, s{sG}, {24*20480}\ns_mul_i32 s50, s{sNQ}, 320\ns_add_u32 s{sWO}, s{sWO}, s50")
    A(f"s_mul_i32 s{sHO2}, s{sT}, 96\ns_mul_i32 s50, s{sG}, 24\ns_add_u32 s{sHO2}, s{sHO2}, s50\ns_lshl_b32 s{sHO2}, s{sHO2}, 10\ns_add_u32 s{sHO2}, s{sHO2}, {WS_H}")
    def issue_stage(st, sw, sh):
        for i in range(5):
            A(f"s_add_u32 m0, s{sLB}, {st*GW_STAGE + i*1024}")
            A("s_nop 0")
            A(f"buffer_load_dwordx4 v{VD+i}, s[{sWD}:{sWD+3}], s{sw} offen lds")
        A(f"buffer_load_dwordx4 {v(HFR+4*st,4)}, v{VL16}, s[{sWS}:{sWS+3}], s{sh} offen")
        A(f"s_add_u32 s{sWO}, s{sWO}, 20480\ns_add_u32 s{sHO2}, s{sHO2}, 1024")
    for i in range(80): A(f"v_mov_b32 v{ACC+i}, 0")
    A(f"s_mov_b32 s{sI}, 0")
    A(f"s_add_u32 s{sSL}, s{sKVL}, {KVSLOT}")
    A("s_waitcnt vmcnt(0) lgkmcnt(0)")
    A("s_barrier")
    for st in range(3): issue_stage(st, sWO, sHO2)
    A(".p2align 6")
    A.label(f"{name}_gloop")
    kv_dma(sSL)
    A(f"s_add_u32 s{sSL}, s{sSL}, {KVSLOT}\ns_cmp_ge_u32 s{sSL}, {3*KVSLOT}\ns_cselect_b32 s50, {3*KVSLOT}, 0\ns_sub_u32 s{sSL}, s{sSL}, s50")
    for k4 in range(4):
        if abl & 1: continue
        A(f"s_waitcnt vmcnt({18 if k4 < 3 else 12})")
        for t in range(5):
            for j in range(2):
                A(f"ds_read_b64_tr_b16 {v(WFR+4*t+2*j,2)}, v{VRD} offset:{k4*GW_STAGE + j*1280 + t*64}")
        if k4 >= 1:
            A(f"s_cmp_lt_u32 s{sI}, 5\ns_cselect_b32 s50, s{sWO}, 0x40000000\ns_cselect_b32 s51, s{sHO2}, 0x40000000")
            issue_stage((k4 + 3) % 4, 50, 51)
        else:
            issue_stage((k4 + 3) % 4, sWO, sHO2)
        for t in range(5):
            A(f"s_waitcnt lgkmcnt({8-2*t})")
            if not no_gemm:
                A(f"v_mfma_f32_32x32x16_bf16 {v(ACC+16*t,16)}, {v(WFR+4*t,4)}, {v(HFR+4*k4,4)}, {v(ACC+16*t,16)}")
    A("s_waitcnt vmcnt(24)" if not abl & 1 else "s_waitcnt vmcnt(0)")
    A(f"s_cmp_eq_u32 s{sI}, 5\ns_cbranch_scc0 {name}_gnw")
    A("s_waitcnt vmcnt(0)")
    A.label(f"{name}_gnw")
    if not abl & 2: A("s_barrier")
    A(f"s_add_u32 s{sI}, s{sI}, 1\ns_cmp_lt_u32 s{sI}, 6")
    A(f"s_cbranch_scc1 {name}_gloop")
    kv_dma(sSL)
    A(f"v_and_b32 v2, 31, v{LANE}\nv_lshrrev_b32 v3, 5, v{LANE}")
    A(f"s_lshl_b32 s50, s{sT}, 5\nv_add_u32 v2, s50, v2\ns_movk_i32 s50, 1280\nv_mul_lo_u32 v{VX}, v2, s50")
    A(f"v_lshl_add_u32 v{VX}, v3, 3, v{VX}")
    A(f"s_mul_i32 s50, s{sNQ}, 320\ns_lshl_b32 s51, s{sG}, 4\ns_add_u32 s50, s50, s51")
    for t in range(5):
        A(f"buffer_load_dwordx2 {v(XR+2*t,2)}, v{VX}, s[{sX}:{sX+3}], s50 offen offset:{t*64}")
    def red_write():
        for aq in range(4):
            A(f"s_cmp_eq_u32 s{sG}, {aq}")
            A(f"s_cbranch_scc1 {name}_rw{aq}")
            A(f"s_sub_u32 s50, s{sG}, {aq+1}\ns_and_b32 s50, s50, 3\ns_mul_i32 s50, s50, 5120\ns_add_u32 s50, s50, {RED_BASE + aq*15360}")
            A(f"v_add_u32 v2, s50, v{VL16}")
            for t in range(5):
                A(f"ds_write_b128 v2, {v(ACC+16*t+4*aq,4)} offset:{t*1024}")
            A.label(f"{name}_rw{aq}")
        for aq in range(4):
            A(f"s_cmp_eq_u32 s{sG}, {aq}")
            A(f"s_cbranch_scc0 {name}_rm{aq}")
            for t in range(5):
                for i in range(4): A(f"v_mov_b32 v{WFR+4*t+i}, v{ACC+16*t+4*aq+i}")
            A.label(f"{name}_rm{aq}")
    def red_read():
        A(f"s_mul_i32 s50, s{sG}, 15360\ns_add_u32 s50, s50, {RED_BASE}\nv_add_u32 v2, s50, v{VL16}")
        for sl in range(3):
            for t in range(5):
                A(f"ds_read_b128 {v(ACC+20*sl+4*t,4)}, v2 offset:{sl*5120+t*1024}")
    def red_add():
        for t in range(5):
            for hlf in range(2):
                A(f"v_lshlrev_b32 v3, 16, v{XR+2*t+hlf}\nv_and_b32 v4, 0xffff0000, v{XR+2*t+hlf}")
                A(f"v_add_f32 v{WFR+4*t+2*hlf}, v{WFR+4*t+2*hlf}, v3\nv_add_f32 v{WFR+4*t+2*hlf+1}, v{WFR+4*t+2*hlf+1}, v4")
        for sl in range(3):
            A(f"s_waitcnt lgkmcnt({10-5*sl})")
            for i in range(20): A(f"v_add_f32 v{WFR+i}, v{WFR+i}, v{ACC+20*sl+i}")
    if not fuse:
        red_write()
        A("s_waitcnt vmcnt(5) lgkmcnt(0)")
        if not abl & 2: A("s_barrier")
        red_read()
        A("s_waitcnt vmcnt(0) lgkmcnt(0)")
        if not abl & 2: A("s_barrier")
        red_add()
        A(f"s_mul_i32 s50, s{sT}, 20\ns_mul_i32 s51, s{sNQ}, 5\ns_add_u32 s50, s50, s51\ns_lshl_b32 s50, s50, 2\ns_add_u32 s50, s50, s{sG}\ns_lshl_b32 s50, s50, 10\ns_add_u32 s50, s50, {WS_Y}")
        for t in range(5):
            A(f"buffer_store_dwordx4 {v(WFR+4*t,4)}, v{VL16}, s[{sWS}:{sWS+3}], s50 offen")
            if t < 4: A("s_add_u32 s50, s50, 4096")
        A("s_barrier")
    else:
        sWOs, sOUT, sDBG = 36, 56, 60
        srd(A, sWOs, 10, 11, D * D * 2)
        srd(A, sOUT, 12, 13, S * D * 2)
        A(f"v_add_u32 v{VX}, s50, v{VX}")
        A(f"s_mul_i32 s{sWO}, s{sG}, {10*20480}\ns_mul_i32 s50, s{sNQ}, 320\ns_add_u32 s{sWO}, s{sWO}, s50")
        A(f"s_mul_i32 s55, s{sG}, {GW_STAGE}")
        A(f"v_subrev_u32 v{VRD2}, s{sLB}, v{VRD}\nv_add_u32 v{VRD2}, s55, v{VRD2}")
        def st_of(k):
            if 4 <= k <= 6: return 55, VRD2, (6 - k) * KVSLOT
            return sLB, VRD, (k if k < 4 else k - 7) * GW_STAGE
        def wo_stage(k):
            base, _, off = st_of(k)
            for i in range(5):
                A(f"s_add_u32 m0, s{base}, {off + i*1024}")
                A("s_nop 0")
                A(f"buffer_load_dwordx4 v{VD+i}, s[{sWOs}:{sWOs+3}], s{sWO} offen lds")
            A(f"s_add_u32 s{sWO}, s{sWO}, 20480")
        for k in range(4): wo_stage(k)
        A("s_waitcnt vmcnt(25)")
        A("s_barrier")
        wo_stage(4)
        A(f"s_lshl_b32 s51, s{sQB}, 10\ns_lshr_b32 s50, s{sHEAD}, 3\ns_lshl_b32 s50, s50, 8\ns_add_u32 s65, s51, s50\ns_add_u32 s65, s65, {WS_FLAG}")
        A(f"s_lshr_b32 s51, s{sT}, 3\ns_lshl_b32 s51, s51, 10\ns_lshl_b32 s50, s{sG}, 8\ns_add_u32 s51, s51, s50\ns_add_u32 s51, s51, {WS_FLAG}")
        A(f"s_mul_i32 s{sHO2}, s{sT}, 40\ns_mul_i32 s50, s{sG}, 10\ns_add_u32 s{sHO2}, s{sHO2}, s50\ns_lshl_b32 s{sHO2}, s{sHO2}, 10\ns_add_u32 s{sHO2}, s{sHO2}, {WS_O}")
        A("v_mov_b32 v2, 0\nv_mov_b32 v4, 1")
        A("s_mov_b32 s64, 0")
        A("s_barrier")
        A("s_barrier")
        wo_stage(5)
        gst(1)
        A("s_barrier")
        gst(2)
        A(f"s_cmp_eq_u32 s{sG}, 0")
        A(f"s_cbranch_scc0 {name}_nosig")
        A("s_mov_b64 exec, 1")
        A(f"buffer_atomic_add v4, v2, s[{sWS}:{sWS+3}], s65 offen sc1")
        A("s_mov_b64 exec, -1")
        A.label(f"{name}_nosig")
        wo_stage(6)
        gst(3)
        def wread(k, t):
            _, rd, off = st_of(k)
            for j in range(2):
                A(f"ds_read_b64_tr_b16 {v(WFR+4*t+2*j,2)}, v{rd} offset:{off + j*1280 + t*64}")
        A("s_waitcnt vmcnt(11)")
        for t in range(5): wread(0, t)
        if sleep0: A(f"s_sleep {sleep0}")
        A("s_mov_b64 exec, 1")
        A.label(f"{name}_poll")
        A(f"buffer_load_dword v3, v2, s[{sWS}:{sWS+3}], s51 offen sc1")
        A("s_add_u32 s64, s64, 1")
        A("s_waitcnt vmcnt(0)")
        A("v_readfirstlane_b32 s50, v3")
        A("s_nop 3")
        A("s_cmp_ge_u32 s50, 8")
        A(f"s_cbranch_scc1 {name}_go")
        A(f"s_sleep {sleep1}")
        A("s_cmp_lt_u32 s64, 0x40000")
        A(f"s_cbranch_scc1 {name}_poll")
        A.label(f"{name}_go")
        A("s_mov_b64 exec, -1")
        gst(4)
        for k in range(10):
            A(f"buffer_load_dwordx4 {v(OFR+4*k,4)}, v{VL16}, s[{sWS}:{sWS+3}], s{sHO2} offen offset:{(k%4)*1024} sc1")
            if k % 4 == 3: A(f"s_add_u32 s{sHO2}, s{sHO2}, 4096")
        order = [("o", k) for k in range(10)]
        def cnt_after(tag): return sum(1 if o[0] == "o" else 5 for o in order[order.index(tag) + 1:])
        for k in range(10):
            A("s_waitcnt lgkmcnt(0)")
            if k < 3:
                wo_stage(k + 7); order.append(("d", k + 7))
            A(f"s_waitcnt vmcnt({cnt_after(('o', k))})")
            if k == 0: gst(5)
            for t in range(5):
                A(f"v_mfma_f32_32x32x16_bf16 {v(ACC+16*t,16)}, {v(WFR+4*t,4)}, {v(OFR+4*k,4)}, {v(ACC+16*t,16)}")
                if k < 9:
                    if t == 0 and k + 1 >= 7: A(f"s_waitcnt vmcnt({cnt_after(('d', k + 1))})")
                    wread(k + 1, t)
        gst(6)
        A("s_barrier")
        A("s_nop 7")
        red_write()
        A("s_waitcnt lgkmcnt(0)")
        A("s_barrier")
        red_read()
        red_add()
        for t in range(5):
            A(f"v_cvt_pk_bf16_f32 v{OFR+2*t}, v{WFR+4*t}, v{WFR+4*t+1}\nv_cvt_pk_bf16_f32 v{OFR+2*t+1}, v{WFR+4*t+2}, v{WFR+4*t+3}")
            A(f"buffer_store_dwordx2 {v(OFR+2*t,2)}, v{VX}, s[{sOUT}:{sOUT+3}], 0 offen offset:{t*64}")
        gst(7)
        stamp_dump(A, gstamps, 8, sWS, 12, name)
    stamp_out(1, None)
    A.label(f"{name}_end")
    rt_end(A, rt, 1, sWS, name)
    A("s_waitcnt vmcnt(0)")
    A("s_endpgm")
    return A.text(), kernel_desc(name, 168, 168)
```
